```python
import torch

def _softmax(x, axis=-1):
    return torch.softmax(x, dim=axis)
def _gelu(x):
    return torch.nn.functional.gelu(x, approximate="tanh")
def _silu(x):
    return torch.nn.functional.silu(x)
def _sigmoid(x):
    return torch.sigmoid(x)
def _layernorm(x, axis=-1, eps=1e-5):
    m = x.mean(dim=axis, keepdim=True)
    v = x.var(dim=axis, keepdim=True, unbiased=False)
    return (x - m) / torch.sqrt(v + eps)
def _scatter_add(tgt, idx, src, axis=0):
    return tgt.clone().index_add_(axis, idx, src)
def _segment_sum(src, seg, n):
    out = torch.zeros((n,) + src.shape[1:], dtype=src.dtype)
    return out.index_add_(0, seg, src)
def _pad(x, pw):
    flat = tuple(v for pair in reversed(pw) for v in pair)
    return torch.nn.functional.pad(x, flat)

kernel_name = 'standalone__channel_attn_eca__vision'

def setup_inputs():

    _w = (lambda a: (lambda t: t.to(torch.bfloat16) if t.is_floating_point() else t)(torch.as_tensor(a)))
    H = W = 512
    C = 192
    k = 1
    return {
        "x": _w((lambda *s: torch.randn(*s, dtype=torch.bfloat16) * 0.4)(1, H, W, C) + (lambda *s: torch.randn(*s, dtype=torch.bfloat16) * 0.4)(1, 1, 1, C) * 2.0),
        "w1d": _w((lambda *s: torch.randn(*s, dtype=torch.bfloat16) * 0.4)(k)),
    }

def reference(x, w1d):
    B, H, W, C = x.shape
    k = 1
    pad = k // 2
    g = torch.einsum("bhwc->bc", x) / (H * W)
    gp = _pad(g, ((0, 0), (pad, pad)))
    s = torch.zeros_like(g)
    for i in range(k):
        s = s + gp[:, i:i + C] * w1d[i]
    s = _sigmoid(s)
    return x * s[:, None, None, :]
```

```python
import sys, argparse

HEADER = """; Kernarg layout for this problem (40 bytes, ptrs only, base s[0:1]):
"""

NAME = "standalone__channel_attn_eca__vision_kernel"
XBYTES = 100663296
NWG = 256

def gen(layout="A", ldf="", stf="", ts=False, h1T=True, cntpos=30, tsdbg=False, meas=None, tsall=False):
    L = []
    A = L.append
    NW = 8
    NQ = 48
    NG = NQ // 3
    DATA = 64
    ACC = 8
    T = 32
    H2 = 256 * 1024
    TSOFF = 512 * 1024
    LDS_S = NW * 1024
    lds = LDS_S + 768
    A(HEADER.rstrip("\n"))
    A(f"; @launch grid=({NWG},1,1) block=({NW*64},1,1) lds={lds}")
    A('.amdgcn_target "amdgcn-amd-amdhsa--gfx950"')
    A(".text")
    A(f".globl {NAME}")
    A(".p2align 8")
    A(f".type {NAME},@function")
    A(f"{NAME}:")
    def stamp(i):
        if ts:
            A(f"  s_memrealtime s[{60+2*i}:{61+2*i}]")
    A(f"  s_cmp_ge_u32 s2, {NWG}")
    A("  s_cbranch_scc1 L_end")
    stamp(0)
    A("  s_load_dwordx4 s[4:7], s[0:1], 0")
    A("  s_load_dwordx4 s[8:11], s[0:1], 16")
    A("  s_load_dwordx2 s[12:13], s[0:1], 32")
    A("  v_lshrrev_b32 v2, 6, v0")
    A("  v_and_b32 v3, 63, v0")
    A("  v_lshrrev_b32 v4, 3, v3            ; lane>>3")
    A("  v_readfirstlane_b32 s14, v2")
    A("  v_and_b32 v5, 7, v3                ; lane&7")
    A("  v_mul_u32_u24 v6, 0x180, v4")
    A("  v_lshl_add_u32 v1, v5, 4, v6")
    A("  s_mov_b32 s36, 0xffff0000")
    A("  s_lshl_b32 s15, s2, 3")
    A("  s_add_u32 s15, s15, s14")
    if layout == "A":
        A("  s_mul_i32 s37, s15, 49152")
        stride = 3072
    elif layout == "B":
        A("  s_mul_i32 s37, s15, 3072")
        stride = 2048 * 3072
    elif layout == "C":
        A("  s_mul_i32 s37, s2, 393216")
        A("  s_mul_i32 s38, s14, 3072")
        A("  s_add_u32 s37, s37, s38")
        stride = 8 * 3072
    A("  s_waitcnt lgkmcnt(0)")
    A("  s_mov_b32 s16, s4")
    A("  s_mov_b32 s17, s5")
    A(f"  s_mov_b32 s18, {XBYTES}")
    A("  s_mov_b32 s19, 0x20000")
    A("  s_mov_b32 s20, s8")
    A("  s_mov_b32 s21, s9")
    A(f"  s_mov_b32 s22, {XBYTES}")
    A("  s_mov_b32 s23, 0x20000")
    A("  s_mov_b32 s24, s10")
    A("  s_mov_b32 s25, s11")
    A("  s_mov_b32 s26, 256")
    A("  s_mov_b32 s27, 0x20000")
    A("  s_mov_b32 s28, s12")
    A("  s_mov_b32 s29, s13")
    A("  s_mov_b32 s30, 0x100000")
    A("  s_mov_b32 s31, 0x20000")
    A("  s_mov_b32 s32, s6")
    A("  s_mov_b32 s33, s7")
    A("  s_mov_b32 s34, 2")
    A("  s_mov_b32 s35, 0x20000")
    if h1T:
        A("  v_lshlrev_b32 v7, 12, v3           ; lane*4096")
        A("  s_lshl_b32 s39, s2, 4              ; wg*16")
    else:
        A("  v_lshlrev_b32 v7, 4, v3            ; lane*16")
        A("  s_lshl_b32 s39, s2, 10             ; wg*1024")
    A("  s_cmp_eq_u32 s14, 0")
    A("  s_cbranch_scc0 L_noclear")
    for i in range(4):
        A(f"  v_mov_b32 v{T+i}, -1")
    A(f"  buffer_store_dwordx4 v[{T}:{T+3}], v7, s[28:31], s39 offen sc1")
    A("  s_cmp_eq_u32 s2, 0")
    A("  s_cbranch_scc0 L_noclear2")
    A(f"  v_lshlrev_b32 v{T+4}, 4, v3")
    A(f"  s_mov_b32 s40, {H2}")
    A(f"  buffer_store_dwordx4 v[{T}:{T+3}], v{T+4}, s[28:31], s40 offen sc1")
    A("L_noclear2:")
    A(f"  v_mov_b32 v{T+5}, 1")
    A("  s_waitcnt vmcnt(0)")
    A("  s_mov_b64 exec, 1")
    A(f"  buffer_atomic_add v{T+5}, off, s[24:27], 0")
    A("  s_mov_b64 exec, -1")
    A("L_noclear:")
    A("  s_cmp_eq_u32 s14, 1")
    A("  s_cbranch_scc0 L_now")
    A("  buffer_load_ushort v48, off, s[32:35], 0")
    A("L_now:")
    A("  s_mov_b32 s38, s37")
    for i in range(NG):
        for p in range(3):
            k = 3 * i + p
            r = DATA + 4 * k
            A(f"  buffer_load_dwordx4 v[{r}:{r+3}], v1, s[16:19], s38 offen offset:{128*p} {ldf}".rstrip())
        if i != NG - 1:
            A(f"  s_add_u32 s38, s38, {stride}")
    stamp(1)
    extra = 0
    for k in range(NQ):
        p = k % 3
        r = DATA + 4 * k
        if k == cntpos:
            A("  buffer_load_dword v49, off, s[24:27], 0 sc1")
            extra = 1
        A(f"  s_waitcnt vmcnt({NQ - 1 - k + extra})")
        for d in range(4):
            a0 = ACC + 8 * p + 2 * d
            if k < 3:
                A(f"  v_lshlrev_b32 v{a0}, 16, v{r+d}")
                A(f"  v_and_b32 v{a0+1}, s36, v{r+d}")
            else:
                t0 = T + 2 * d
                A(f"  v_lshlrev_b32 v{t0}, 16, v{r+d}")
                A(f"  v_and_b32 v{t0+1}, s36, v{r+d}")
                A(f"  v_add_f32 v{a0}, v{a0}, v{t0}")
                A(f"  v_add_f32 v{a0+1}, v{a0+1}, v{t0+1}")
    stamp(2)
    A("  s_nop 1")
    for p in range(3):
        for e in range(4):
            a, b = ACC + 8 * p + e, ACC + 8 * p + e + 4
            A(f"  v_permlane32_swap_b32 v{a}, v{b}")
    for p in range(3):
        for e in range(4):
            a, b = ACC + 8 * p + e, ACC + 8 * p + e + 4
            A(f"  v_add_f32 v{a}, v{a}, v{b}")
    A("  s_nop 1")
    for p in range(3):
        for e in range(2):
            a, b = ACC + 8 * p + e, ACC + 8 * p + e + 2
            A(f"  v_permlane16_swap_b32 v{a}, v{b}")
    for p in range(3):
        for e in range(2):
            a, b = ACC + 8 * p + e, ACC + 8 * p + e + 2
            A(f"  v_add_f32 v{a}, v{a}, v{b}")
    A("  s_nop 1")
    for p in range(3):
        a = ACC + 8 * p
        A(f"  v_add_f32_dpp v{T+p}, v{a}, v{a} row_ror:8 row_mask:0xf bank_mask:0x3")
    for p in range(3):
        a = ACC + 8 * p + 1
        A(f"  v_add_f32_dpp v{T+p}, v{a}, v{a} row_ror:8 row_mask:0xf bank_mask:0xc")
    A(f"  v_lshlrev_b32 v{T+4}, 4, v0          ; (wave*64+lane)*16")
    A(f"  v_mov_b32 v{T+3}, 0")
    A(f"  ds_write_b128 v{T+4}, v[{T}:{T+3}]")
    A("  s_waitcnt vmcnt(0) lgkmcnt(0)")
    A("  s_barrier")
    A("  s_cmp_eq_u32 s14, 0")
    A("  s_cbranch_scc1 L_wave0")
    A("  s_cmp_eq_u32 s14, 1")
    A("  s_cbranch_scc0 L_bar2")
    A("  s_cmp_lt_u32 s2, 64")
    A("  s_cbranch_scc0 L_bar2")
    A("  v_readfirstlane_b32 s41, v49")
    A("  s_mov_b32 s42, 0")
    A("L_rcnt:")
    A(f"  s_cmp_ge_u32 s41, {NWG}")
    A("  s_cbranch_scc1 L_rcnt_ok")
    A("  buffer_load_dword v49, off, s[24:27], 0 sc1")
    A("  s_waitcnt vmcnt(0)")
    A("  v_readfirstlane_b32 s41, v49")
    A("  s_add_u32 s42, s42, 1")
    A("  s_cmp_lt_u32 s42, 0x20000")
    A("  s_cbranch_scc1 L_rcnt")
    A("L_rcnt_ok:")
    if h1T:
        A("  v_lshlrev_b32 v50, 4, v3           ; lane*16")
        A("  s_lshl_b32 s43, s2, 12             ; g*4096")
        joff = 1024
        A("  s_mov_b32 s42, 0")
        A("L_rpoll:")
        for j in range(4):
            A(f"  buffer_load_dwordx4 v[{ACC+4*j}:{ACC+4*j+3}], v50, s[28:31], s43 offen offset:{joff*j} sc1")
    else:
        A("  v_lshlrev_b32 v50, 10, v3          ; lane*1024")
        for j in range(1, 4):
            A(f"  v_add_u32 v{50+j}, {65536*j}, v50")
        A("  s_lshl_b32 s43, s2, 4              ; g*16")
        A("  s_mov_b32 s42, 0")
        A("L_rpoll:")
        for j in range(4):
            A(f"  buffer_load_dwordx4 v[{ACC+4*j}:{ACC+4*j+3}], v{50+j}, s[28:31], s43 offen sc1")
    A("  s_waitcnt vmcnt(0)")
    a = ACC
    A(f"  v_max3_u32 v{T}, v{a}, v{a+1}, v{a+2}")
    for j in range(1, 4):
        A(f"  v_max3_u32 v{T}, v{T}, v{a+4*j}, v{a+4*j+1}")
        A(f"  v_max_u32 v{T}, v{T}, v{a+4*j+2}")
    A(f"  v_cmp_eq_u32 vcc, -1, v{T}")
    A("  s_cbranch_vccz L_rok")
    A("  s_add_u32 s42, s42, 1")
    A("  s_cmp_lt_u32 s42, 0x20000")
    A("  s_cbranch_scc1 L_rpoll")
    A("L_rok:")
    for c in range(3):
        A(f"  v_add_f32 v{T+c}, v{a+c}, v{a+4+c}")
    for c in range(3):
        A(f"  v_add_f32 v{T+4+c}, v{a+8+c}, v{a+12+c}")
    for c in range(3):
        A(f"  v_add_f32 v{T+c}, v{T+c}, v{T+4+c}")
    for dpp in ["row_shr:1", "row_shr:2", "row_shr:4", "row_shr:8", "row_bcast:15 row_mask:0xa", "row_bcast:31 row_mask:0xc"]:
        A("  s_nop 1")
        for c in range(3):
            if "shr" in dpp:
                A(f"  v_add_f32_dpp v{T+c}, v{T+c}, v{T+c} {dpp} row_mask:0xf bank_mask:0xf bound_ctrl:0")
            else:
                A(f"  v_add_f32_dpp v{T+c}, v{T+c}, v{T+c} {dpp} bank_mask:0xf")
    A(f"  v_lshlrev_b32 v48, 16, v48          ; w as f32")
    A("  s_mov_b32 s44, 0x36800000           ; 2^-18")
    A("  s_mov_b32 s45, 0xbfb8aa3b           ; -log2(e)")
    def rnd(reg):
        A(f"  v_cvt_pk_bf16_f32 v{reg}, v{reg}, v{reg}")
        A(f"  v_and_b32 v{reg}, s36, v{reg}")
    for c in range(3): rnd(T + c)
    for c in range(3): A(f"  v_mul_f32 v{T+c}, s44, v{T+c}")
    for c in range(3): rnd(T + c)
    for c in range(3): A(f"  v_mul_f32 v{T+c}, v48, v{T+c}")
    for c in range(3): rnd(T + c)
    for c in range(3): A(f"  v_add_f32 v{T+c}, 0, v{T+c}")
    for c in range(3): A(f"  v_mul_f32 v{T+c}, s45, v{T+c}")
    for c in range(3): A(f"  v_exp_f32 v{T+c}, v{T+c}")
    A("  s_nop 0")
    for c in range(3): A(f"  v_add_f32 v{T+c}, 1.0, v{T+c}")
    for c in range(3): A(f"  v_rcp_f32 v{T+c}, v{T+c}")
    A("  s_nop 0")
    for c in range(3): rnd(T + c)
    A(f"  v_mov_b32 v{T+3}, 0")
    A(f"  s_lshl_b32 s43, s2, 4")
    A(f"  s_add_u32 s43, s43, {H2}")
    A("  s_mov_b32 exec_lo, 0")
    A("  s_mov_b32 exec_hi, 0x80000000")
    A(f"  buffer_store_dwordx4 v[{T}:{T+3}], off, s[28:31], s43 sc1")
    A("  s_mov_b64 exec, -1")
    A("  s_branch L_bar2")
    A("L_wave0:")
    A(f"  v_lshlrev_b32 v50, 4, v3           ; lane*16")
    for w in range(NW):
        A(f"  ds_read_b128 v[{ACC+4*w}:{ACC+4*w+3}], v50 offset:{1024*w}") if ACC + 4*w + 3 < T else None
    A(f"  ds_read_b128 v[40:43], v50 offset:{1024*6}")
    A(f"  ds_read_b128 v[44:47], v50 offset:{1024*7}")
    A("  s_waitcnt lgkmcnt(0)")
    for c in range(3):
        A(f"  v_add_f32 v{T+c}, v{ACC+c}, v{ACC+4+c}")
    for c in range(3):
        A(f"  v_add_f32 v{T+4+c}, v{ACC+8+c}, v{ACC+12+c}")
    for c in range(3):
        A(f"  v_add_f32 v{ACC+c}, v{ACC+16+c}, v{ACC+20+c}")
    for c in range(3):
        A(f"  v_add_f32 v{ACC+4+c}, v{40+c}, v{44+c}")
    for c in range(3):
        A(f"  v_add_f32 v{T+c}, v{T+c}, v{T+4+c}")
    for c in range(3):
        A(f"  v_add_f32 v{ACC+c}, v{ACC+c}, v{ACC+4+c}")
    for c in range(3):
        A(f"  v_add_f32 v{T+c}, v{T+c}, v{ACC+c}")
    A(f"  v_mov_b32 v{T+3}, 0")
    A(f"  buffer_store_dwordx4 v[{T}:{T+3}], v7, s[28:31], s39 offen sc1")
    stamp(3)
    A("  v_readfirstlane_b32 s41, v49")
    A("  s_mov_b32 s42, 0")
    A("L_wcnt:")
    A(f"  s_cmp_ge_u32 s41, {NWG}")
    A("  s_cbranch_scc1 L_wcnt_ok")
    A("  buffer_load_dword v49, off, s[24:27], 0 sc1")
    A("  s_waitcnt vmcnt(0)")
    A("  v_readfirstlane_b32 s41, v49")
    A("  s_add_u32 s42, s42, 1")
    A("  s_cmp_lt_u32 s42, 0x20000")
    A("  s_cbranch_scc1 L_wcnt")
    A("L_wcnt_ok:")
    A(f"  s_mov_b32 s43, {H2}")
    A("  s_mov_b32 s42, 0")
    A("L_wpoll:")
    A(f"  buffer_load_dwordx4 v[{ACC}:{ACC+3}], v50, s[28:31], s43 offen sc1")
    A("  s_waitcnt vmcnt(0)")
    A(f"  v_max3_u32 v{ACC+4}, v{ACC}, v{ACC+1}, v{ACC+2}")
    A(f"  v_cmp_eq_u32 vcc, -1, v{ACC+4}")
    A("  s_cbranch_vccz L_wok")
    A("  s_add_u32 s42, s42, 1")
    A("  s_cmp_lt_u32 s42, 0x20000")
    A("  s_cbranch_scc1 L_wpoll")
    A("L_wok:")
    A(f"  v_lshl_add_u32 v{ACC+5}, v5, 3, v4")
    A(f"  v_lshlrev_b32 v{ACC+5}, 2, v{ACC+5}")
    for p in range(3):
        A(f"  ds_write_b32 v{ACC+5}, v{ACC+p} offset:{LDS_S + 256*p}")
    A("  s_waitcnt lgkmcnt(0)")
    A("L_bar2:")
    A("  s_barrier")
    stamp(4)
    A(f"  v_lshlrev_b32 v50, 5, v5            ; (l&7)*32 bytes")
    for p in range(3):
        for h in range(2):
            A(f"  ds_read_b128 v[{ACC+8*p+4*h}:{ACC+8*p+4*h+3}], v50 offset:{LDS_S + 256*p + 16*h}")
    A("  s_mov_b32 s38, s37")
    A("  s_waitcnt lgkmcnt(0)")
    for k in range(NQ):
        p = k % 3
        r = DATA + 4 * k
        for d in range(4):
            t0 = T + 2 * d
            A(f"  v_lshlrev_b32 v{t0}, 16, v{r+d}")
            A(f"  v_and_b32 v{t0+1}, s36, v{r+d}")
            A(f"  v_mul_f32 v{t0}, v{t0}, v{ACC+8*p+2*d}")
            A(f"  v_mul_f32 v{t0+1}, v{t0+1}, v{ACC+8*p+2*d+1}")
        for d in range(4):
            t0 = T + 2 * d
            A(f"  v_cvt_pk_bf16_f32 v{r+d}, v{t0}, v{t0+1}")
        A(f"  buffer_store_dwordx4 v[{r}:{r+3}], v1, s[20:23], s38 offen offset:{128*p} {stf}".rstrip())
        if p == 2 and k != NQ - 1:
            A(f"  s_add_u32 s38, s38, {stride}")
    stamp(5)
    if ts and tsall: pass
    if ts and meas:
        a, b, M = meas
        A("  s_waitcnt vmcnt(0)")
        stamp(6)
        A("  s_waitcnt lgkmcnt(0)")
        A("  s_cmp_eq_u32 s15, 0")
        A("  s_cbranch_scc0 L_end")
        A(f"  s_sub_u32 s46, s{60+2*b}, s{60+2*a}")
        A(f"  s_mul_i32 s46, s46, {M}")
        A("  s_min_u32 s46, s46, 200000")
        A("L_spin:")
        A("  s_memrealtime s[48:49]")
        A("  s_waitcnt lgkmcnt(0)")
        A("  s_sub_u32 s47, s48, s72")
        A("  s_cmp_lt_u32 s47, s46")
        A("  s_cbranch_scc1 L_spin")
    elif ts and tsall:
        A("  s_waitcnt vmcnt(0)")
        stamp(6)
        A("  s_getreg_b32 s50, hwreg(HW_REG_XCC_ID)")
        A("  s_getreg_b32 s51, hwreg(HW_REG_HW_ID)")
        A("  s_and_b32 s50, s50, 0xf")
        A("  s_lshl_b32 s50, s50, 24")
        A("  s_and_b32 s51, s51, 0xffffff")
        A("  s_or_b32 s50, s50, s51")
        A("  s_waitcnt lgkmcnt(0)")
        A("  s_mov_b64 exec, 1")
        A(f"  s_lshl_b32 s43, s15, 5")
        A(f"  s_add_u32 s43, s43, {TSOFF+65536}")
        for i in range(7):
            A(f"  v_mov_b32 v{T+i}, s{60+2*i}")
            A(f"  buffer_store_dword v{T+i}, off, s[28:31], s43 offset:{4*i}")
        A(f"  v_mov_b32 v{T+7}, s50")
        A(f"  buffer_store_dword v{T+7}, off, s[28:31], s43 offset:28")
        A("  s_branch L_end")
    elif ts:
        A("  s_waitcnt vmcnt(0)")
        stamp(6)
        A("  s_waitcnt lgkmcnt(0)")
        A("  s_cmp_eq_u32 s14, 0")
        A("  s_cbranch_scc0 L_end")
        A("  s_mov_b64 exec, 1")
        A(f"  s_lshl_b32 s43, s2, 5")
        A(f"  s_add_u32 s43, s43, {TSOFF}")
        for i in range(7):
            A(f"  v_mov_b32 v{T+i}, s{60+2*i}")
            A(f"  buffer_store_dword v{T+i}, off, s[28:31], s43 offset:{4*i}")
        for i in range(7 if tsdbg else 0):
            A(f"  buffer_atomic_umax v{T+i}, off, s[24:27], 0 offset:{4*(1+i)}")
        for i in range(7 if tsdbg else 0):
            A(f"  v_not_b32 v{T+8+i}, v{T+i}")
            A(f"  buffer_atomic_umax v{T+8+i}, off, s[24:27], 0 offset:{4*(8+i)}")
    A("L_end:")
    A("  s_endpgm")
    A('.section .rodata,"a"')
    A(".p2align 6")
    A(f".amdhsa_kernel {NAME}")
    A("  .amdhsa_next_free_vgpr 256")
    A("  .amdhsa_next_free_sgpr 96")
    A("  .amdhsa_accum_offset 256")
    A("  .amdhsa_group_segment_fixed_size 0")
    A("  .amdhsa_kernarg_size 40")
    A("  .amdhsa_user_sgpr_count 2")
    A("  .amdhsa_user_sgpr_kernarg_segment_ptr 1")
    A("  .amdhsa_system_sgpr_workgroup_id_x 1")
    A("  .amdhsa_float_denorm_mode_32 3")
    A(".end_amdhsa_kernel")
    return "\n".join(L) + "\n"

if __name__ == "__main__":
    ap = argparse.ArgumentParser()
    ap.add_argument("-o", default="-")
    ap.add_argument("--layout", default="A")
    ap.add_argument("--ldf", default="")
    ap.add_argument("--stf", default="")
    ap.add_argument("--ts", action="store_true")
    ap.add_argument("--h1n", action="store_true")
    ap.add_argument("--meas", default=None)
    ap.add_argument("--tsall", action="store_true")
    a = ap.parse_args()
    s = gen(layout=a.layout, ldf=a.ldf, stf=a.stf, ts=a.ts, h1T=not a.h1n, meas=tuple(int(x) for x in a.meas.split(",")) if a.meas else None, tsall=a.tsall)
    if a.o == "-":
        sys.stdout.write(s)
    else:
        open(a.o, "w").write(s)
```

```python
import sys, argparse
from gen import HEADER, NAME, XBYTES
NWG = 256

def gen(layout="A", ldf="nt", stf="sc1", ts=False, swin=0, prio=True, meas=None, sleep_poll=4, sleep_lds=1, early_store=False, gate="issue", pk=False, lwin=0, chain=False, schain=True, clrw=8, rsleep=8, csleep=8, stop=0, clrmode="sc", sigmode="atomic", rpf="sc1", wpf="sc1", pubf="sc1", rdelay=0, wdelay=0, h1N=True, warm=None, rmask=False, rwait=False, late=False, nored=False, nopoll=False, onepoll=False, half=False, sgate=None, semi=False, sigk=32, dry=None):
    L = []; A = L.append
    NW = 12; NQ = 32
    ACC = 8; T = 16; DATA = 32; X = 160
    H1 = 0; H2 = 3 * 131072; EOFF = H2 + 4096; TSOFF = 512 * 1024 + 65536
    L_SLOT = 0
    L_S = 3072
    L_RED = 3072 + 768
    L_CTL = 3072 + 768 + 128
    lds = L_CTL + 64
    SPIN = "0x20000"
    A(HEADER.rstrip("\n"))
    A(f"; @launch grid=({NWG},1,1) block=({NW*64},1,1) lds={lds}")
    A('.amdgcn_target "amdgcn-amd-amdhsa--gfx950"'); A(".text"); A(f".globl {NAME}"); A(".p2align 8"); A(f".type {NAME},@function"); A(f"{NAME}:")
    def stamp(i):
        if ts: A(f"  s_memrealtime s[{60+2*i}:{61+2*i}]")
    uid = [0]
    def lab(s):
        uid[0] += 1
        return f"L_{s}_{uid[0]}"
    def lds_spin(off, target, name):
        l0, l1 = lab(name), lab(name + "ok")
        A("  s_mov_b32 s42, 0")
        A(f"{l0}:")
        A(f"  ds_read_b32 v{X+6}, {off}")
        A("  s_waitcnt lgkmcnt(0)")
        A(f"  v_readfirstlane_b32 s41, v{X+6}")
        A(f"  s_cmp_ge_u32 s41, {target}")
        A(f"  s_cbranch_scc1 {l1}")
        if sleep_lds: A(f"  s_sleep {sleep_lds}")
        A("  s_add_u32 s42, s42, 1")
        A(f"  s_cmp_lt_u32 s42, 0x400000")
        A(f"  s_cbranch_scc1 {l0}")
        A(f"{l1}:")
    def cnt_check(name):
        l0, l1 = lab(name), lab(name + "ok")
        A("  s_mov_b32 s42, 0")
        A(f"{l0}:")
        A(f"  buffer_load_dword v{X+6}, off, s[24:27], 0 sc1")
        A("  s_waitcnt vmcnt(0)")
        A(f"  v_readfirstlane_b32 s41, v{X+6}")
        A(f"  s_cmp_ge_u32 s41, {NWG}")
        A(f"  s_cbranch_scc1 {l1}")
        if csleep: A(f"  s_sleep {csleep}")
        A("  s_add_u32 s42, s42, 1")
        A(f"  s_cmp_lt_u32 s42, {SPIN}")
        A(f"  s_cbranch_scc1 {l0}")
        A(f"{l1}:")
    A(f"  s_cmp_ge_u32 s2, {NWG}")
    A("  s_cbranch_scc1 L_end")
    stamp(0)
    if ts:
        for i in (8,9,10): A(f"  s_mov_b32 s{60+2*i}, 0")
    A("  s_load_dwordx4 s[4:7], s[0:1], 0")
    A("  s_load_dwordx4 s[8:11], s[0:1], 16")
    A("  s_load_dwordx2 s[12:13], s[0:1], 32")
    A("  v_lshrrev_b32 v2, 6, v0")
    A("  v_and_b32 v3, 63, v0")
    A("  v_lshrrev_b32 v4, 3, v3            ; lane>>3")
    A("  v_readfirstlane_b32 s14, v2        ; w")
    A("  v_and_b32 v5, 7, v3                ; lane&7")
    A("  v_mul_u32_u24 v6, 0x180, v4")
    A("  v_lshl_add_u32 v1, v5, 4, v6")
    A("  v_mov_b32 v7, 0")
    A("  s_mov_b32 s36, 0xffff0000")
    A("  s_lshr_b32 s44, s14, 2             ; g")
    A("  s_and_b32 s45, s14, 3              ; q")
    A("  s_cmp_eq_u32 s14, 0")
    A("  s_cbranch_scc0 L_noinit")
    A("  v_lshlrev_b32 v6, 2, v3")
    A("  s_mov_b64 exec, 0xffff")
    A(f"  ds_write_b32 v6, v7 offset:{L_CTL}")
    A("  s_mov_b64 exec, -1")
    A("L_noinit:")
    if layout == "A":
        A("  s_mul_i32 s37, s2, 393216")
        A("  s_mul_i32 s38, s45, 98304")
        stride = 3072
    elif layout == "C":
        A("  s_mul_i32 s37, s2, 393216")
        A("  s_mul_i32 s38, s45, 3072")
        stride = 4 * 3072
    elif layout == "B":
        A("  s_mul_i32 s37, s2, 12288")
        A("  s_mul_i32 s38, s45, 3072")
        stride = 1024 * 3072
    A("  s_add_u32 s37, s37, s38")
    A("  s_lshl_b32 s38, s44, 7")
    A("  s_add_u32 s37, s37, s38")
    if prio:
        A("  s_cmp_eq_u32 s44, 0"); A("  s_cbranch_scc0 L_p1"); A("  s_setprio 2"); A("  s_branch L_p2")
        A("L_p1:"); A("  s_cmp_eq_u32 s44, 1"); A("  s_cbranch_scc0 L_p2"); A("  s_setprio 1"); A("L_p2:")
    A("  s_waitcnt lgkmcnt(0)")
    A("  s_barrier")
    for base, src, n in ((16, 4, XBYTES), (20, 8, XBYTES), (24, 10, 256), (28, 12, 0x100000), (32, 6, 2)):
        A(f"  s_mov_b32 s{base}, s{src}"); A(f"  s_mov_b32 s{base+1}, s{src+1}"); A(f"  s_mov_b32 s{base+2}, {n}"); A(f"  s_mov_b32 s{base+3}, 0x20000")
    A(f"  s_add_u32 s54, s12, {EOFF}")
    A("  s_addc_u32 s55, s13, 0")
    A("  s_load_dword s56, s[54:55], 0")
    if h1N:
        A("  v_lshlrev_b32 v2, 3, v3            ; lane*8")
        A("  s_lshl_b32 s39, s2, 9              ; wg*512")
    else:
        A("  v_lshrrev_b32 v2, 1, v3")
        A("  v_lshlrev_b32 v2, 12, v2")
        A("  v_and_b32 v6, 1, v3")
        A("  v_lshl_add_u32 v2, v6, 3, v2")
        A("  s_lshl_b32 s39, s2, 4              ; wg*16")
    if warm is not None:
        A("  s_cmp_eq_u32 s14, 8")
        A("  s_cbranch_scc0 L_nowarm")
        if prio: A("  s_setprio 3")
        A(f"  v_lshlrev_b32 v{T}, 4, v3")
        A("  s_mul_i32 s40, s2, 1536")
        A(f"  buffer_load_dwordx4 v[{T+4}:{T+7}], v{T}, s[28:31], s40 offen {warm}".rstrip())
        A("  s_mov_b32 exec_hi, 0")
        A(f"  buffer_load_dwordx4 v[{T+8}:{T+11}], v{T}, s[28:31], s40 offen offset:1024 {warm}".rstrip())
        A("  s_mov_b64 exec, -1")
        if prio: A("  s_setprio 0")
        A("L_nowarm:")
    A(f"  s_lshl_b32 s47, s45, 2")
    A(f"  v_mov_b32 v{X+7}, s47")
    if chain:
        A("  s_cmp_eq_u32 s44, 0")
        A("  s_cbranch_scc1 L_nochain")
        lds_spin(f"v{X+7} offset:{L_CTL+32}", "s44", "ch")
        A("L_nochain:")
    A("  s_mov_b32 s38, s37")
    A(f"  s_mov_b32 s46, {stride*2 if stride*2 < (1<<31) and stride < 4096 else stride}")
    def accum(k):
        r = DATA + 4 * k
        for d in range(4):
            a0 = ACC + 2 * d
            if k == 0:
                A(f"  v_lshlrev_b32 v{a0}, 16, v{r+d}")
                A(f"  v_and_b32 v{a0+1}, s36, v{r+d}")
            else:
                t0 = T + 2 * d
                A(f"  v_lshlrev_b32 v{t0}, 16, v{r+d}")
                A(f"  v_and_b32 v{t0+1}, s36, v{r+d}")
                A(f"  v_add_f32 v{a0}, v{a0}, v{t0}")
                A(f"  v_add_f32 v{a0+1}, v{a0+1}, v{t0+1}")
    for k in range(NQ):
        r = DATA + 4 * k
        if lwin and k >= lwin: A(f"  s_waitcnt vmcnt({lwin-1})")
        if stride < 4096:
            off = (k & 1) * stride
            A(f"  buffer_load_dwordx4 v[{r}:{r+3}], v1, s[16:19], s38 offen offset:{off} {ldf}".rstrip())
            if (k & 1) and k != NQ - 1: A("  s_add_u32 s38, s38, s46")
        else:
            A(f"  buffer_load_dwordx4 v[{r}:{r+3}], v1, s[16:19], s38 offen {ldf}".rstrip())
            if k != NQ - 1: A("  s_add_u32 s38, s38, s46")
        if lwin and k >= lwin: accum(k - lwin)
        if gate == "issue" and sigk < NQ and k == sigk - 1:
            A("  s_cmp_eq_u32 s44, 2")
            A("  s_cbranch_scc0 L_nosigk")
            A(f"  v_mov_b32 v{X+5}, 1")
            A("  s_mov_b64 exec, 1")
            A(f"  ds_add_u32 v7, v{X+5} offset:{L_CTL+24}")
            A("  s_mov_b64 exec, -1")
            A("L_nosigk:")
    stamp(1)
    A("  s_waitcnt lgkmcnt(0)")
    A("  s_add_u32 s56, s56, 0x9e3779b9     ; tag")
    if chain:
        A(f"  v_mov_b32 v{T}, 1")
        A("  s_mov_b64 exec, 1")
        A(f"  ds_add_u32 v{X+7}, v{T} offset:{L_CTL+32}")
        A("  s_mov_b64 exec, -1")
    A("  s_cmp_eq_u32 s44, 2")
    A("  s_cbranch_scc0 L_notg2")
    if gate == "issue" and sigk >= NQ:
        A(f"  v_mov_b32 v{T}, 1")
        A("  s_mov_b64 exec, 1")
        A(f"  ds_add_u32 v7, v{T} offset:{L_CTL+24}")
        A("  s_mov_b64 exec, -1")
    if prio: A("  s_setprio 3")
    A("L_notg2:")
    for k in range((NQ - lwin) if lwin else 0, NQ):
        A(f"  s_waitcnt vmcnt({NQ - 1 - k})")
        accum(k)
    stamp(2)
    if stop == 1:
        for i in (3,4,5,6): stamp(i)
        A("  s_branch L_fin")
    if gate == "land":
        A("  s_cmp_eq_u32 s44, 2")
        A("  s_cbranch_scc0 L_notg2b")
        A(f"  v_mov_b32 v{T}, 1")
        A("  s_mov_b64 exec, 1")
        A(f"  ds_add_u32 v7, v{T} offset:{L_CTL+24}")
        A("  s_mov_b64 exec, -1")
        A("L_notg2b:")
    A("  s_nop 1")
    for e in range(4): A(f"  v_permlane32_swap_b32 v{ACC+e}, v{ACC+e+4}")
    for e in range(4): A(f"  v_add_f32 v{ACC+e}, v{ACC+e}, v{ACC+e+4}")
    A("  s_nop 1")
    for e in range(2): A(f"  v_permlane16_swap_b32 v{ACC+e}, v{ACC+e+2}")
    for e in range(2): A(f"  v_add_f32 v{ACC+e}, v{ACC+e}, v{ACC+e+2}")
    A("  s_nop 1")
    A(f"  v_add_f32_dpp v{T}, v{ACC}, v{ACC} row_ror:8 row_mask:0xf bank_mask:0x3")
    A(f"  v_add_f32_dpp v{T}, v{ACC+1}, v{ACC+1} row_ror:8 row_mask:0xf bank_mask:0xc")
    A(f"  v_lshlrev_b32 v{T+1}, 2, v0")
    A(f"  ds_write_b32 v{T+1}, v{T} offset:{L_SLOT}")
    A(f"  s_lshl_b32 s47, s44, 2             ; g*4")
    A(f"  v_mov_b32 v{X}, s47")
    def emit_dry():
        A(f"  s_cmp_eq_u32 s14, {dry}")
        A("  s_cbranch_scc0 L_nodry")
        A("  s_mov_b32 s83, 1")
        A("  s_mov_b64 exec, 0")
        A("  s_branch L_storecode")
        A("L_dryback:")
        A("  s_mov_b64 exec, -1")
        A("L_nodry:")
        A("  s_mov_b32 s83, 0")
    if dry is not None and late: emit_dry()
    if late:
        A("  s_cmp_eq_u32 s44, 2")
        A("  s_cbranch_scc1 L_nolate")
        lds_spin(f"v7 offset:{L_CTL+24}", 4, "late")
        A("L_nolate:")
    A(f"  v_mov_b32 v{T+2}, 1")
    A("  s_waitcnt lgkmcnt(0)")
    A("  s_mov_b64 exec, 1")
    A(f"  ds_add_rtn_u32 v{T+3}, v{X}, v{T+2} offset:{L_CTL}")
    A("  s_waitcnt lgkmcnt(0)")
    A("  s_mov_b64 exec, -1")
    A(f"  v_readfirstlane_b32 s41, v{T+3}")
    A("  s_cmp_eq_u32 s41, 3")
    A("  s_cbranch_scc0 L_nopub")
    A(f"  s_lshl_b32 s47, s44, 10            ; g*1024")
    A(f"  v_lshl_add_u32 v{T+1}, v3, 2, s47")
    for q in range(4): A(f"  ds_read_b32 v{T+4+q}, v{T+1} offset:{L_SLOT + 256*q}")
    A("  s_waitcnt lgkmcnt(0)")
    A(f"  v_add_f32 v{T+4}, v{T+4}, v{T+5}")
    A(f"  v_add_f32 v{T+6}, v{T+6}, v{T+7}")
    A(f"  s_lshl_b32 s40, s44, 17            ; g*131072")
    A(f"  s_add_u32 s40, s40, s39")
    A(f"  v_add_f32 v{T+4}, v{T+4}, v{T+6}")
    A(f"  v_mov_b32 v{T+5}, s56")
    A(f"  buffer_store_dwordx2 v[{T+4}:{T+5}], v2, s[28:31], s40 offen {pubf}")
    A("L_nopub:")
    stamp(3)
    if stop == 2:
        for i in (4,5,6): stamp(i)
        A("  s_branch L_fin")
    if dry is not None and not late: emit_dry()
    if nored: A("  s_branch L_nored")
    A("  s_cmp_lt_u32 s2, 24")
    A("  s_cbranch_scc0 L_nored")
    A("  s_lshr_b32 s48, s2, 3              ; tg")
    if late or semi: A("  s_mov_b32 s49, s48")
    else: A("  s_and_b32 s49, s48, 2")
    A("  s_cmp_eq_u32 s44, s49")
    A("  s_cbranch_scc0 L_nored")
    A(f"  buffer_load_ushort v{X+1}, off, s[32:35], 0")
    if semi:
        A("  s_cmp_eq_u32 s44, 2")
        A("  s_cbranch_scc1 L_semi_r")
        lds_spin(f"v7 offset:{L_CTL+24}", 4, "semr")
        A("L_semi_r:")
    if rwait:
        A("  s_lshl_b32 s49, s48, 2")
        A(f"  v_mov_b32 v{X+4}, s49")
        lds_spin(f"v{X+4} offset:{L_CTL}", 4, "rw")
    if half:
        A("  s_and_b32 s49, s2, 7               ; i")
        A("  s_lshl_b32 s50, s48, 17")
        A("  s_lshl_b32 s51, s49, 6")
        A("  s_add_u32 s50, s50, s51")
        A("  s_lshl_b32 s51, s45, 15")
        A("  s_add_u32 s50, s50, s51            ; tg*131072 + i*64 + q*32768")
        for m in range(1,4): A(f"  s_add_u32 s{56+m}, s50, {8192*m}")
        A(f"  v_lshrrev_b32 v{X+2}, 2, v3")
        A(f"  v_lshlrev_b32 v{X+2}, 9, v{X+2}")
        A(f"  v_and_b32 v{X+3}, 3, v3")
        A(f"  v_lshl_add_u32 v{X+2}, v{X+3}, 4, v{X+2}   ; (l>>2)*512 + (l&3)*16")
        for _ in range(rdelay): A("  s_sleep 32")
        A("  s_mov_b32 s42, 0")
        A("L_rpoll:")
        for m in range(4):
            A(f"  buffer_load_dwordx4 v[{T+4*m}:{T+4*m+3}], v{X+2}, s[28:31], s{50 if m==0 else 56+m} offen {rpf}")
        A("  s_waitcnt vmcnt(0)")
        for m in range(8): A(f"  v_xor_b32 v{T+2*m+1}, s56, v{T+2*m+1}")
        A(f"  v_or3_b32 v{X+3}, v{T+1}, v{T+3}, v{T+5}")
        A(f"  v_or3_b32 v{X+3}, v{X+3}, v{T+7}, v{T+9}")
        A(f"  v_or3_b32 v{X+3}, v{X+3}, v{T+11}, v{T+13}")
        A(f"  v_or_b32 v{X+3}, v{X+3}, v{T+15}")
        A(f"  v_cmp_ne_u32 vcc, 0, v{X+3}")
        A("  s_cbranch_vccz L_rok")
        if rmask: A("  s_mov_b64 exec, vcc")
        if rsleep: A(f"  s_sleep {rsleep}")
        A("  s_add_u32 s42, s42, 1")
        A(f"  s_cmp_lt_u32 s42, {SPIN}")
        A("  s_cbranch_scc1 L_rpoll")
        A("L_rok:")
        if rmask: A("  s_mov_b64 exec, -1")
        stamp(8)
        A(f"  v_add_f32 v{T}, v{T}, v{T+4}")
        A(f"  v_add_f32 v{T+2}, v{T+2}, v{T+6}")
        A(f"  v_add_f32 v{T+8}, v{T+8}, v{T+12}")
        A(f"  v_add_f32 v{T+10}, v{T+10}, v{T+14}")
        A(f"  v_add_f32 v{T}, v{T}, v{T+8}")
        A(f"  v_add_f32 v{T+2}, v{T+2}, v{T+10}")
        for rr in (8, 4):
            A("  s_nop 1")
            A(f"  v_add_f32_dpp v{T}, v{T}, v{T} row_ror:{rr} row_mask:0xf bank_mask:0xf")
            A(f"  v_add_f32_dpp v{T+2}, v{T+2}, v{T+2} row_ror:{rr} row_mask:0xf bank_mask:0xf")
        A("  s_nop 1")
        A(f"  v_permlane32_swap_b32 v{T}, v{T+2}")
        A(f"  v_add_f32 v{T}, v{T}, v{T+2}")
        A(f"  v_mov_b32 v{T+1}, v{T}")
        A("  s_nop 1")
        A(f"  v_permlane16_swap_b32 v{T}, v{T+1}")
        A(f"  v_add_f32 v{T}, v{T}, v{T+1}")
        A(f"  v_and_b32 v{T+1}, 3, v3")
        A(f"  v_lshlrev_b32 v{T+1}, 3, v{T+1}")
        A(f"  v_lshrrev_b32 v{T+2}, 5, v3")
        A(f"  v_lshl_add_u32 v{T+1}, v{T+2}, 2, v{T+1}")
        A(f"  s_lshl_b32 s50, s45, 5")
        A(f"  v_add_u32 v{T+1}, s50, v{T+1}")
        A(f"  v_mov_b32 v{T+2}, 1")
        A("  s_mov_b32 exec_lo, 0xf")
        A("  s_mov_b32 exec_hi, 0xf")
        A(f"  ds_write_b32 v{T+1}, v{T} offset:{L_RED}")
        A("  s_waitcnt lgkmcnt(0)")
        A("  s_mov_b64 exec, 1")
        A(f"  ds_add_rtn_u32 v{T+3}, v7, v{T+2} offset:{L_CTL+48}")
        A("  s_waitcnt lgkmcnt(0)")
        A("  s_mov_b64 exec, -1")
        A(f"  v_readfirstlane_b32 s41, v{T+3}")
        A("  s_cmp_eq_u32 s41, 3")
        A("  s_cbranch_scc0 L_nored")
        A(f"  v_and_b32 v{T+2}, 7, v3")
        A(f"  v_lshlrev_b32 v{T+2}, 2, v{T+2}")
        for q in range(4): A(f"  ds_read_b32 v{T+4+q}, v{T+2} offset:{L_RED + 32*q}")
        A(f"  v_lshlrev_b32 v{X+1}, 16, v{X+1}    ; w as f32")
        A("  s_mov_b32 s52, 0x36800000           ; 2^-18")
        A("  s_mov_b32 s53, 0xbfb8aa3b           ; -log2(e)")
        A("  s_lshl_b32 s50, s2, 7")
        A(f"  s_add_u32 s50, s50, {H2}")
        A("  s_waitcnt lgkmcnt(0)")
        A(f"  v_add_f32 v{T+4}, v{T+4}, v{T+5}")
        A(f"  v_add_f32 v{T+6}, v{T+6}, v{T+7}")
        A(f"  v_add_f32 v{T}, v{T+4}, v{T+6}")
        def rnd(reg):
            A(f"  v_cvt_pk_bf16_f32 v{reg}, v{reg}, v{reg}")
            A(f"  v_and_b32 v{reg}, s36, v{reg}")
        rnd(T)
        A(f"  v_mul_f32 v{T}, s52, v{T}")
        rnd(T)
        A(f"  v_mul_f32 v{T}, v{X+1}, v{T}")
        rnd(T)
        A(f"  v_add_f32 v{T}, 0, v{T}")
        A(f"  v_mul_f32 v{T}, s53, v{T}")
        A(f"  v_exp_f32 v{T}, v{T}")
        A(f"  v_lshlrev_b32 v{T+2}, 3, v3")
        A(f"  v_add_f32 v{T}, 1.0, v{T}")
        A(f"  v_rcp_f32 v{T}, v{T}")
        A(f"  v_mov_b32 v{T+1}, s56")
        rnd(T)
        A(f"  v_mov_b32 v{T+1}, s56")
        A("  s_mov_b64 exec, 0xffff")
        A(f"  buffer_store_dwordx2 v[{T}:{T+1}], v{T+2}, s[28:31], s50 offen sc1")
        stamp(9)
        if ts:
            A("  s_waitcnt vmcnt(0)")
            stamp(10)
        A("  s_mov_b64 exec, -1")
    else:
        A("  s_and_b32 s49, s2, 7               ; i")
        A("  s_lshl_b32 s49, s49, 2")
        A("  s_add_u32 s49, s49, s45            ; j = 4i+q")
        A("  s_lshl_b32 s50, s48, 17")
        if h1N:
            A("  s_lshl_b32 s51, s49, 4")
            A("  s_add_u32 s50, s50, s51            ; tg*131072 + j*16")
            A(f"  v_lshlrev_b32 v{X+2}, 9, v3         ; lane*512")
            for m in range(1,4): A(f"  s_add_u32 s{56+m}, s50, {32768*m}")
        else:
            A("  s_lshl_b32 s51, s49, 12")
            A("  s_add_u32 s50, s50, s51            ; tg*131072 + j*4096")
            A(f"  v_lshlrev_b32 v{X+2}, 4, v3")
        for _ in range(rdelay): A("  s_sleep 32")
        A("  s_mov_b32 s42, 0")
        A("L_rpoll:")
        for m in range(4):
            if h1N: A(f"  buffer_load_dwordx4 v[{T+4*m}:{T+4*m+3}], v{X+2}, s[28:31], s{50 if m==0 else 56+m} offen {rpf}")
            else: A(f"  buffer_load_dwordx4 v[{T+4*m}:{T+4*m+3}], v{X+2}, s[28:31], s50 offen offset:{1024*m} {rpf}")
        A("  s_waitcnt vmcnt(0)")
        for m in range(8): A(f"  v_xor_b32 v{T+2*m+1}, s56, v{T+2*m+1}")
        A(f"  v_or3_b32 v{X+3}, v{T+1}, v{T+3}, v{T+5}")
        A(f"  v_or3_b32 v{X+3}, v{X+3}, v{T+7}, v{T+9}")
        A(f"  v_or3_b32 v{X+3}, v{X+3}, v{T+11}, v{T+13}")
        A(f"  v_or_b32 v{X+3}, v{X+3}, v{T+15}")
        A(f"  v_cmp_ne_u32 vcc, 0, v{X+3}")
        A("  s_cbranch_vccz L_rok")
        if rmask:
            A("  s_mov_b64 exec, vcc")
        if rsleep: A(f"  s_sleep {rsleep}")
        A("  s_add_u32 s42, s42, 1")
        A(f"  s_cmp_lt_u32 s42, {SPIN}")
        A("  s_cbranch_scc1 L_rpoll")
        A("L_rok:")
        if rmask: A("  s_mov_b64 exec, -1")
        stamp(8)
        if ts: A("  s_mov_b32 s82, s42")
        A(f"  v_add_f32 v{T}, v{T}, v{T+4}")
        A(f"  v_add_f32 v{T+2}, v{T+2}, v{T+6}")
        A(f"  v_add_f32 v{T+8}, v{T+8}, v{T+12}")
        A(f"  v_add_f32 v{T+10}, v{T+10}, v{T+14}")
        A(f"  v_add_f32 v{T}, v{T}, v{T+8}")
        A(f"  v_add_f32 v{T+2}, v{T+2}, v{T+10}")
        A("  s_nop 1")
        A(f"  v_permlane32_swap_b32 v{T}, v{T+2}")
        A(f"  v_add_f32 v{T}, v{T}, v{T+2}")
        A(f"  v_mov_b32 v{T+1}, v{T}")
        A("  s_nop 1")
        A(f"  v_permlane16_swap_b32 v{T}, v{T+1}")
        A(f"  v_add_f32 v{T}, v{T}, v{T+1}")
        for rr in (8, 4, 2, 1):
            A("  s_nop 1")
            A(f"  v_add_f32_dpp v{T}, v{T}, v{T} row_ror:{rr} row_mask:0xf bank_mask:0xf")
        A(f"  v_lshlrev_b32 v{X+1}, 16, v{X+1}    ; w as f32")
        A("  s_mov_b32 s52, 0x36800000           ; 2^-18")
        A("  s_mov_b32 s53, 0xbfb8aa3b           ; -log2(e)")
        def rnd(reg):
            A(f"  v_cvt_pk_bf16_f32 v{reg}, v{reg}, v{reg}")
            A(f"  v_and_b32 v{reg}, s36, v{reg}")
        rnd(T)
        A(f"  v_mul_f32 v{T}, s52, v{T}")
        rnd(T)
        A(f"  v_mul_f32 v{T}, v{X+1}, v{T}")
        rnd(T)
        A(f"  v_add_f32 v{T}, 0, v{T}")
        A(f"  v_mul_f32 v{T}, s53, v{T}")
        A(f"  v_exp_f32 v{T}, v{T}")
        A("  s_nop 0")
        A(f"  v_add_f32 v{T}, 1.0, v{T}")
        A(f"  v_rcp_f32 v{T}, v{T}")
        A("  s_nop 0")
        rnd(T)
        A(f"  v_lshrrev_b32 v{T+1}, 5, v3")
        A(f"  s_lshl_b32 s50, s45, 3")
        A(f"  v_lshl_add_u32 v{T+1}, v{T+1}, 2, s50     ; q*8 + v*4")
        A(f"  v_mov_b32 v{T+2}, 1")
        A("  s_mov_b32 exec_lo, 1")
        A("  s_mov_b32 exec_hi, 1")
        A(f"  ds_write_b32 v{T+1}, v{T} offset:{L_RED}")
        A("  s_waitcnt lgkmcnt(0)")
        A("  s_mov_b64 exec, 1")
        A(f"  ds_add_rtn_u32 v{T+3}, v7, v{T+2} offset:{L_CTL+48}")
        A("  s_waitcnt lgkmcnt(0)")
        A("  s_mov_b64 exec, -1")
        A(f"  v_readfirstlane_b32 s41, v{T+3}")
        A("  s_cmp_eq_u32 s41, 3")
        A("  s_cbranch_scc0 L_nored")
        A(f"  v_and_b32 v{T+2}, 7, v3")
        A(f"  v_lshlrev_b32 v{T+2}, 2, v{T+2}")
        A("  s_mov_b64 exec, 0xffff")
        A(f"  ds_read_b32 v{T}, v{T+2} offset:{L_RED}")
        A(f"  v_lshlrev_b32 v{T+2}, 3, v3")
        A(f"  v_mov_b32 v{T+1}, s56")
        A("  s_lshl_b32 s50, s2, 7")
        A(f"  s_add_u32 s50, s50, {H2}")
        A("  s_waitcnt lgkmcnt(0)")
        A(f"  buffer_store_dwordx2 v[{T}:{T+1}], v{T+2}, s[28:31], s50 offen sc1")
        stamp(9)
        if ts:
            A("  s_waitcnt vmcnt(0)")
            stamp(10)
        A("  s_mov_b64 exec, -1")
    A("L_nored:")
    if nopoll:
        for i in (4,5,6): stamp(i)
        A("  s_branch L_fin")
    A("  s_cmp_eq_u32 s45, 3")
    A("  s_cbranch_scc0 L_nopoll")
    if semi:
        A("  s_cmp_eq_u32 s44, 2")
        A("  s_cbranch_scc1 L_semi_p")
        lds_spin(f"v7 offset:{L_CTL+24}", 4, "semp")
        A("L_semi_p:")
    A(f"  v_lshrrev_b32 v{X+2}, 3, v3")
    A(f"  v_lshlrev_b32 v{X+2}, 7, v{X+2}")
    A(f"  v_and_b32 v{X+3}, 7, v3")
    A(f"  v_lshl_add_u32 v{X+2}, v{X+3}, 3, v{X+2}   ; (l>>3)*128 + (l&7)*8")
    A("  s_lshl_b32 s50, s44, 10")
    A(f"  s_add_u32 s50, s50, {H2}")
    for _ in range(wdelay): A("  s_sleep 32")
    A("  s_mov_b32 s42, 0")
    A("L_wpoll:")
    A(f"  buffer_load_dwordx2 v[{T}:{T+1}], v{X+2}, s[28:31], s50 offen {wpf}")
    A("  s_waitcnt vmcnt(0)")
    A(f"  v_cmp_ne_u32 vcc, s56, v{T+1}")
    A("  s_cbranch_vccz L_wok")
    if sleep_poll: A(f"  s_sleep {sleep_poll}")
    A("  s_add_u32 s42, s42, 1")
    A(f"  s_cmp_lt_u32 s42, {SPIN}")
    A("  s_cbranch_scc1 L_wpoll")
    A("L_wok:")
    A(f"  v_lshl_add_u32 v{T+1}, v5, 3, v4")
    A(f"  v_lshlrev_b32 v{T+1}, 2, v{T+1}")
    A("  s_lshl_b32 s50, s44, 8")
    A(f"  v_add_u32 v{T+1}, s50, v{T+1}")
    A(f"  ds_write_b32 v{T+1}, v{T} offset:{L_S}")
    A(f"  v_mov_b32 v{T+2}, 1")
    A("  s_waitcnt lgkmcnt(0)")
    A("  s_mov_b64 exec, 1")
    A(f"  ds_write_b32 v{X}, v{T+2} offset:{L_CTL+12}")
    A("  s_mov_b64 exec, -1")
    A("  s_cmp_eq_u32 s2, 0")
    A("  s_cbranch_scc0 L_nopoll")
    A("  s_cmp_eq_u32 s44, 2")
    A("  s_cbranch_scc0 L_nopoll")
    lds_spin(f"v7 offset:{L_CTL+12}", 1, "e0")
    lds_spin(f"v7 offset:{L_CTL+16}", 1, "e1")
    A(f"  v_mov_b32 v{T+2}, s56")
    A(f"  s_mov_b32 s50, {EOFF}")
    A("  s_mov_b64 exec, 1")
    A(f"  buffer_store_dword v{T+2}, off, s[28:31], s50 sc1")
    A("  s_mov_b64 exec, -1")
    A("L_nopoll:")
    lds_spin(f"v{X} offset:{L_CTL+12}", 1, "sf")
    stamp(4)
    A("  s_lshl_b32 s50, s44, 8")
    A(f"  v_lshl_add_u32 v{T}, v5, 5, s50     ; g*256 + (l&7)*32")
    A(f"  ds_read_b128 v[{ACC}:{ACC+3}], v{T} offset:{L_S}")
    A(f"  ds_read_b128 v[{ACC+4}:{ACC+7}], v{T} offset:{L_S+16}")
    if chain:
        if schain:
            A("  s_add_u32 s47, s44, 3")
            lds_spin(f"v{X+7} offset:{L_CTL+32}", "s47", "sch")
        else:
            A("  s_cmp_eq_u32 s44, 2")
            A("  s_cbranch_scc1 L_nogate")
            lds_spin(f"v{X+7} offset:{L_CTL+32}", 3, "sch")
            A("L_nogate:")
        if prio: A("  s_setprio 0")
    elif sgate is not None:
        A("  s_cmp_eq_u32 s44, 2")
        A("  s_cbranch_scc1 L_nogate")
        lds_spin(f"v7 offset:{L_CTL+24}", 4, "is")
        lds_spin(f"v7 offset:{L_CTL+12+4*sgate}", 1, "sg")
        if prio: A("  s_setprio 0")
        A("L_nogate:")
    elif late or semi:
        if prio: A("  s_setprio 0")
    elif not early_store:
        A("  s_cmp_eq_u32 s44, 2")
        A("  s_cbranch_scc1 L_nogate")
        lds_spin(f"v7 offset:{L_CTL+24}", 4, "is")
        if prio: A("  s_setprio 0")
        A("L_nogate:")
    A("  s_mov_b32 s38, s37")
    A("  s_waitcnt lgkmcnt(0)")
    stamp(5)
    if stop == 3:
        if chain and schain:
            A(f"  v_mov_b32 v{T}, 1")
            A("  s_mov_b64 exec, 1")
            A(f"  ds_add_u32 v{X+7}, v{T} offset:{L_CTL+32}")
            A("  s_mov_b64 exec, -1")
        stamp(6)
        A("  s_branch L_fin")
    if dry is not None: A("L_storecode:")
    for k in range(NQ):
        r = DATA + 4 * k
        for d in range(4):
            t0 = T + 2 * d
            A(f"  v_lshlrev_b32 v{t0}, 16, v{r+d}")
            A(f"  v_and_b32 v{t0+1}, s36, v{r+d}")
            if pk:
                A(f"  v_pk_mul_f32 v[{t0}:{t0+1}], v[{t0}:{t0+1}], v[{ACC+2*d}:{ACC+2*d+1}]")
            else:
                A(f"  v_mul_f32 v{t0}, v{t0}, v{ACC+2*d}")
                A(f"  v_mul_f32 v{t0+1}, v{t0+1}, v{ACC+2*d+1}")
        for d in range(4):
            t0 = T + 2 * d
            A(f"  v_cvt_pk_bf16_f32 v{r+d}, v{t0}, v{t0+1}")
        if swin and k >= swin: A(f"  s_waitcnt vmcnt({swin-1})")
        if dry is not None: A(f"  s_cbranch_execz L_sk{k}")
        if stride < 4096:
            off = (k & 1) * stride
            A(f"  buffer_store_dwordx4 v[{r}:{r+3}], v1, s[20:23], s38 offen offset:{off} {stf}".rstrip())
            if dry is not None: A(f"L_sk{k}:")
            if (k & 1) and k != NQ - 1: A("  s_add_u32 s38, s38, s46")
        else:
            A(f"  buffer_store_dwordx4 v[{r}:{r+3}], v1, s[20:23], s38 offen {stf}".rstrip())
            if dry is not None: A(f"L_sk{k}:")
            if k != NQ - 1: A("  s_add_u32 s38, s38, s46")
    if dry is not None:
        A("  s_cmp_eq_u32 s83, 1")
        A("  s_cbranch_scc1 L_dryback")
    if chain and schain:
        A(f"  v_mov_b32 v{T}, 1")
        A("  s_mov_b64 exec, 1")
        A(f"  ds_add_u32 v{X+7}, v{T} offset:{L_CTL+32}")
        A("  s_mov_b64 exec, -1")
    stamp(6)
    A("L_fin:")
    if ts and meas:
        a, b, M = meas
        A("  s_waitcnt vmcnt(0)")
        stamp(7)
        A("  s_waitcnt lgkmcnt(0)")
        A("  s_mul_i32 s15, s2, 12"); A("  s_add_u32 s15, s15, s14")
        A(f"  s_cmp_eq_u32 s15, {meas_wave[0]}")
        A("  s_cbranch_scc0 L_end")
        A(f"  s_sub_u32 s46, s{60+2*b}, s{60+2*a}")
        A(f"  s_mul_i32 s46, s46, {M}")
        A("  s_min_u32 s46, s46, 200000")
        A("L_spin:")
        A("  s_memrealtime s[48:49]")
        A("  s_waitcnt lgkmcnt(0)")
        A("  s_sub_u32 s47, s48, s74")
        A("  s_cmp_lt_u32 s47, s46")
        A("  s_cbranch_scc1 L_spin")
    elif ts:
        A("  s_waitcnt vmcnt(0)")
        stamp(7)
        A("  s_getreg_b32 s50, hwreg(HW_REG_XCC_ID)")
        A("  s_and_b32 s50, s50, 0xf")
        A("  s_waitcnt lgkmcnt(0)")
        A("  s_mov_b64 exec, 1")
        A("  s_mul_i32 s15, s2, 12"); A("  s_add_u32 s15, s15, s14")
        A(f"  s_mul_i32 s43, s15, 48")
        A(f"  s_add_u32 s43, s43, {TSOFF}")
        for i in range(8):
            A(f"  v_mov_b32 v{T+i}, s{60+2*i}")
            A(f"  buffer_store_dword v{T+i}, off, s[28:31], s43 offset:{4*i}")
        A(f"  v_mov_b32 v{T+8}, s50")
        A(f"  buffer_store_dword v{T+8}, off, s[28:31], s43 offset:32")
        for i in (8,9,10):
            A(f"  v_mov_b32 v{T+i+1}, s{60+2*i}")
            A(f"  buffer_store_dword v{T+i+1}, off, s[28:31], s43 offset:{4*(i+1)}")
    A("L_end:")
    A("  s_endpgm")
    A('.section .rodata,"a"'); A(".p2align 6"); A(f".amdhsa_kernel {NAME}")
    A("  .amdhsa_next_free_vgpr 168"); A("  .amdhsa_next_free_sgpr 96"); A("  .amdhsa_accum_offset 168")
    A("  .amdhsa_group_segment_fixed_size 0"); A("  .amdhsa_kernarg_size 40"); A("  .amdhsa_user_sgpr_count 2")
    A("  .amdhsa_user_sgpr_kernarg_segment_ptr 1"); A("  .amdhsa_system_sgpr_workgroup_id_x 1"); A("  .amdhsa_float_denorm_mode_32 3")
    A(".end_amdhsa_kernel")
    return "\n".join(L) + "\n"
meas_wave = [0]
if __name__ == "__main__":
    ap = argparse.ArgumentParser()
    ap.add_argument("-o", default="-"); ap.add_argument("--layout", default="A"); ap.add_argument("--ldf", default="nt"); ap.add_argument("--stf", default="sc1")
    ap.add_argument("--ts", action="store_true"); ap.add_argument("--swin", type=int, default=0); ap.add_argument("--noprio", action="store_true")
    ap.add_argument("--meas", default=None); ap.add_argument("--mw", type=int, default=0); ap.add_argument("--sp", type=int, default=4); ap.add_argument("--sl", type=int, default=1)
    ap.add_argument("--early", action="store_true"); ap.add_argument("--gate", default="issue"); ap.add_argument("--pk", action="store_true"); ap.add_argument("--lwin", type=int, default=0); ap.add_argument("--chain", action="store_true"); ap.add_argument("--noschain", action="store_true"); ap.add_argument("--rsleep", type=int, default=8); ap.add_argument("--clrw", type=int, default=8); ap.add_argument("--stop", type=int, default=0); ap.add_argument("--noclr", action="store_true"); ap.add_argument("--clrmode", default="sc"); ap.add_argument("--sigmode", default="atomic"); ap.add_argument("--rpf", default="sc1"); ap.add_argument("--wpf", default="sc1"); ap.add_argument("--pubf", default="sc1"); ap.add_argument("--rdelay", type=int, default=0); ap.add_argument("--wdelay", type=int, default=0); ap.add_argument("--h1T", action="store_true"); ap.add_argument("--warm", default=None); ap.add_argument("--rmask", action="store_true"); ap.add_argument("--rwait", action="store_true"); ap.add_argument("--late", action="store_true"); ap.add_argument("--nored", action="store_true"); ap.add_argument("--nopoll", action="store_true"); ap.add_argument("--half", action="store_true"); ap.add_argument("--sgate", type=int, default=None); ap.add_argument("--semi", action="store_true"); ap.add_argument("--sigk", type=int, default=32); ap.add_argument("--dry", type=int, default=None)
    a = ap.parse_args()
    meas_wave[0] = a.mw
    s = gen(layout=a.layout, ldf=a.ldf, stf=a.stf, ts=a.ts, swin=a.swin, prio=not a.noprio, meas=tuple(int(x) for x in a.meas.split(",")) if a.meas else None,
            sleep_poll=a.sp, sleep_lds=a.sl, early_store=a.early, gate=a.gate, pk=a.pk, lwin=a.lwin, chain=a.chain, schain=not a.noschain, rsleep=a.rsleep, clrw=(99 if a.noclr else a.clrw), stop=a.stop, clrmode=a.clrmode, sigmode=a.sigmode, rpf=a.rpf, wpf=a.wpf, pubf=a.pubf, rdelay=a.rdelay, wdelay=a.wdelay, h1N=not a.h1T, warm=a.warm, rmask=a.rmask, rwait=a.rwait, late=a.late, nored=a.nored, nopoll=a.nopoll, half=a.half, sgate=a.sgate, semi=a.semi, sigk=a.sigk, dry=a.dry)
    if a.o == "-": sys.stdout.write(s)
    else: open(a.o, "w").write(s)
```

```python
import sys, argparse
from gen import HEADER, NAME, XBYTES
NWG = 256

def gen(layout="A", ldf="nt", stf="sc1", ts=False, swin=0, prio=True, meas=None, sleep_poll=4, sleep_lds=1, early_store=False, gate="issue", pk=False, lwin=0, chain=False, schain=True, clrw=8, rsleep=8, csleep=8, stop=0, clrmode="sc", sigmode="atomic", rpf="sc1", wpf="sc1", pubf="sc1", rdelay=0, wdelay=0, h1N=True, warm=None, rmask=False, rwait=False, late=False, nored=False, nopoll=False, onepoll=False, half=False, sgate=None, semi=False, sigk=32, dry=None, prostamp=False):
    L = []; A = L.append
    NW = 12; NQ = 32
    ACC = 8; T = 16; DATA = 32; X = 160
    H1 = 0; H2 = 3 * 131072; EOFF = H2 + 4096; TSOFF = 512 * 1024 + 65536
    L_SLOT = 0
    L_S = 3072
    L_RED = 3072 + 768
    L_CTL = 3072 + 768 + 128
    lds = L_CTL + 64
    SPIN = "0x20000"
    A(HEADER.rstrip("\n"))
    A(f"; @launch grid=({NWG},1,1) block=({NW*64},1,1) lds={lds}")
    A('.amdgcn_target "amdgcn-amd-amdhsa--gfx950"'); A(".text"); A(f".globl {NAME}"); A(".p2align 8"); A(f".type {NAME},@function"); A(f"{NAME}:")
    def stamp(i):
        if ts: A(f"  s_memrealtime s[{60+2*i}:{61+2*i}]")
    uid = [0]
    def lab(s):
        uid[0] += 1
        return f"L_{s}_{uid[0]}"
    def lds_spin(off, target, name):
        l0, l1 = lab(name), lab(name + "ok")
        A("  s_mov_b32 s42, 0")
        A(f"{l0}:")
        A(f"  ds_read_b32 v{X+6}, {off}")
        A("  s_waitcnt lgkmcnt(0)")
        A(f"  v_readfirstlane_b32 s41, v{X+6}")
        A(f"  s_cmp_ge_u32 s41, {target}")
        A(f"  s_cbranch_scc1 {l1}")
        if sleep_lds: A(f"  s_sleep {sleep_lds}")
        A("  s_add_u32 s42, s42, 1")
        A(f"  s_cmp_lt_u32 s42, 0x400000")
        A(f"  s_cbranch_scc1 {l0}")
        A(f"{l1}:")
    def cnt_check(name):
        l0, l1 = lab(name), lab(name + "ok")
        A("  s_mov_b32 s42, 0")
        A(f"{l0}:")
        A(f"  buffer_load_dword v{X+6}, off, s[24:27], 0 sc1")
        A("  s_waitcnt vmcnt(0)")
        A(f"  v_readfirstlane_b32 s41, v{X+6}")
        A(f"  s_cmp_ge_u32 s41, {NWG}")
        A(f"  s_cbranch_scc1 {l1}")
        if csleep: A(f"  s_sleep {csleep}")
        A("  s_add_u32 s42, s42, 1")
        A(f"  s_cmp_lt_u32 s42, {SPIN}")
        A(f"  s_cbranch_scc1 {l0}")
        A(f"{l1}:")
    A(f"  s_cmp_ge_u32 s2, {NWG}")
    A("  s_cbranch_scc1 L_end")
    stamp(0)
    if ts:
        for i in (8,9,10): A(f"  s_mov_b32 s{60+2*i}, 0")
    A("  s_load_dwordx4 s[4:7], s[0:1], 0")
    A("  s_load_dwordx4 s[8:11], s[0:1], 16")
    A("  s_load_dwordx2 s[12:13], s[0:1], 32")
    A("  v_lshrrev_b32 v2, 6, v0")
    A("  v_and_b32 v3, 63, v0")
    A("  v_lshrrev_b32 v4, 3, v3            ; lane>>3")
    A("  v_readfirstlane_b32 s14, v2        ; w")
    A("  v_and_b32 v5, 7, v3                ; lane&7")
    A("  v_mul_u32_u24 v6, 0x180, v4")
    A("  v_lshl_add_u32 v1, v5, 4, v6")
    A("  v_mov_b32 v7, 0")
    A("  s_mov_b32 s36, 0xffff0000")
    A("  s_lshr_b32 s44, s14, 2             ; g")
    A("  s_and_b32 s45, s14, 3              ; q")
    A("  s_cmp_eq_u32 s14, 0")
    A("  s_cbranch_scc0 L_noinit")
    A("  v_lshlrev_b32 v6, 2, v3")
    A("  s_mov_b64 exec, 0xffff")
    A(f"  ds_write_b32 v6, v7 offset:{L_CTL}")
    A("  s_mov_b64 exec, -1")
    A("L_noinit:")
    if layout == "A":
        A("  s_mul_i32 s37, s2, 393216")
        A("  s_mul_i32 s38, s45, 98304")
        stride = 3072
    elif layout == "C":
        A("  s_mul_i32 s37, s2, 393216")
        A("  s_mul_i32 s38, s45, 3072")
        stride = 4 * 3072
    elif layout == "B":
        A("  s_mul_i32 s37, s2, 12288")
        A("  s_mul_i32 s38, s45, 3072")
        stride = 1024 * 3072
    A("  s_add_u32 s37, s37, s38")
    A("  s_lshl_b32 s38, s44, 7")
    A("  s_add_u32 s37, s37, s38")
    if prio:
        A("  s_cmp_eq_u32 s44, 0"); A("  s_cbranch_scc0 L_p1"); A("  s_setprio 2"); A("  s_branch L_p2")
        A("L_p1:"); A("  s_cmp_eq_u32 s44, 1"); A("  s_cbranch_scc0 L_p2"); A("  s_setprio 1"); A("L_p2:")
    A("  s_waitcnt lgkmcnt(0)")
    if prostamp: stamp(9)
    A("  s_barrier")
    for base, src, n in ((16, 4, XBYTES), (20, 8, XBYTES), (24, 10, 256), (28, 12, 0x100000), (32, 6, 2)):
        A(f"  s_mov_b32 s{base}, s{src}"); A(f"  s_mov_b32 s{base+1}, s{src+1}"); A(f"  s_mov_b32 s{base+2}, {n}"); A(f"  s_mov_b32 s{base+3}, 0x20000")
    A(f"  s_add_u32 s54, s12, {EOFF}")
    A("  s_addc_u32 s55, s13, 0")
    A("  s_load_dword s56, s[54:55], 0")
    if h1N:
        A("  v_lshlrev_b32 v2, 3, v3            ; lane*8")
        A("  s_lshl_b32 s39, s2, 9              ; wg*512")
    else:
        A("  v_lshrrev_b32 v2, 1, v3")
        A("  v_lshlrev_b32 v2, 12, v2")
        A("  v_and_b32 v6, 1, v3")
        A("  v_lshl_add_u32 v2, v6, 3, v2")
        A("  s_lshl_b32 s39, s2, 4              ; wg*16")
    if warm is not None:
        A("  s_cmp_eq_u32 s14, 8")
        A("  s_cbranch_scc0 L_nowarm")
        if prio: A("  s_setprio 3")
        A(f"  v_lshlrev_b32 v{T}, 4, v3")
        A("  s_mul_i32 s40, s2, 1536")
        A(f"  buffer_load_dwordx4 v[{T+4}:{T+7}], v{T}, s[28:31], s40 offen {warm}".rstrip())
        A("  s_mov_b32 exec_hi, 0")
        A(f"  buffer_load_dwordx4 v[{T+8}:{T+11}], v{T}, s[28:31], s40 offen offset:1024 {warm}".rstrip())
        A("  s_mov_b64 exec, -1")
        if prio: A("  s_setprio 0")
        A("L_nowarm:")
    A(f"  s_lshl_b32 s47, s45, 2")
    A(f"  v_mov_b32 v{X+7}, s47")
    if chain:
        A("  s_cmp_eq_u32 s44, 0")
        A("  s_cbranch_scc1 L_nochain")
        lds_spin(f"v{X+7} offset:{L_CTL+32}", "s44", "ch")
        A("L_nochain:")
    if prostamp: stamp(10)
    A("  s_mov_b32 s38, s37")
    A(f"  s_mov_b32 s46, {stride*2 if stride*2 < (1<<31) and stride < 4096 else stride}")
    def accum(k):
        r = DATA + 4 * k
        for d in range(4):
            a0 = ACC + 2 * d
            if k == 0:
                A(f"  v_lshlrev_b32 v{a0}, 16, v{r+d}")
                A(f"  v_and_b32 v{a0+1}, s36, v{r+d}")
            else:
                t0 = T + 2 * d
                A(f"  v_lshlrev_b32 v{t0}, 16, v{r+d}")
                A(f"  v_and_b32 v{t0+1}, s36, v{r+d}")
                A(f"  v_add_f32 v{a0}, v{a0}, v{t0}")
                A(f"  v_add_f32 v{a0+1}, v{a0+1}, v{t0+1}")
    for k in range(NQ):
        r = DATA + 4 * k
        if lwin and k >= lwin: A(f"  s_waitcnt vmcnt({lwin-1})")
        if stride < 4096:
            off = (k & 1) * stride
            A(f"  buffer_load_dwordx4 v[{r}:{r+3}], v1, s[16:19], s38 offen offset:{off} {ldf}".rstrip())
            if (k & 1) and k != NQ - 1: A("  s_add_u32 s38, s38, s46")
        else:
            A(f"  buffer_load_dwordx4 v[{r}:{r+3}], v1, s[16:19], s38 offen {ldf}".rstrip())
            if k != NQ - 1: A("  s_add_u32 s38, s38, s46")
        if lwin and k >= lwin: accum(k - lwin)
        if gate == "issue" and sigk < NQ and k == sigk - 1:
            A("  s_cmp_eq_u32 s44, 2")
            A("  s_cbranch_scc0 L_nosigk")
            A(f"  v_mov_b32 v{X+5}, 1")
            A("  s_mov_b64 exec, 1")
            A(f"  ds_add_u32 v7, v{X+5} offset:{L_CTL+24}")
            A("  s_mov_b64 exec, -1")
            A("L_nosigk:")
    stamp(1)
    A("  s_waitcnt lgkmcnt(0)")
    A("  s_add_u32 s56, s56, 0x9e3779b9     ; tag")
    if chain:
        A(f"  v_mov_b32 v{T}, 1")
        A("  s_mov_b64 exec, 1")
        A(f"  ds_add_u32 v{X+7}, v{T} offset:{L_CTL+32}")
        A("  s_mov_b64 exec, -1")
    A("  s_cmp_eq_u32 s44, 2")
    A("  s_cbranch_scc0 L_notg2")
    if gate == "issue" and sigk >= NQ:
        A(f"  v_mov_b32 v{T}, 1")
        A("  s_mov_b64 exec, 1")
        A(f"  ds_add_u32 v7, v{T} offset:{L_CTL+24}")
        A("  s_mov_b64 exec, -1")
    if prio: A("  s_setprio 3")
    A("L_notg2:")
    for k in range((NQ - lwin) if lwin else 0, NQ):
        A(f"  s_waitcnt vmcnt({NQ - 1 - k})")
        accum(k)
    stamp(2)
    if stop == 1:
        for i in (3,4,5,6): stamp(i)
        A("  s_branch L_fin")
    if gate == "land":
        A("  s_cmp_eq_u32 s44, 2")
        A("  s_cbranch_scc0 L_notg2b")
        A(f"  v_mov_b32 v{T}, 1")
        A("  s_mov_b64 exec, 1")
        A(f"  ds_add_u32 v7, v{T} offset:{L_CTL+24}")
        A("  s_mov_b64 exec, -1")
        A("L_notg2b:")
    A("  s_nop 1")
    for e in range(4): A(f"  v_permlane32_swap_b32 v{ACC+e}, v{ACC+e+4}")
    for e in range(4): A(f"  v_add_f32 v{ACC+e}, v{ACC+e}, v{ACC+e+4}")
    A("  s_nop 1")
    for e in range(2): A(f"  v_permlane16_swap_b32 v{ACC+e}, v{ACC+e+2}")
    for e in range(2): A(f"  v_add_f32 v{ACC+e}, v{ACC+e}, v{ACC+e+2}")
    A("  s_nop 1")
    A(f"  v_add_f32_dpp v{T}, v{ACC}, v{ACC} row_ror:8 row_mask:0xf bank_mask:0x3")
    A(f"  v_add_f32_dpp v{T}, v{ACC+1}, v{ACC+1} row_ror:8 row_mask:0xf bank_mask:0xc")
    A(f"  v_lshlrev_b32 v{T+1}, 2, v0")
    A(f"  ds_write_b32 v{T+1}, v{T} offset:{L_SLOT}")
    A(f"  s_lshl_b32 s47, s44, 2             ; g*4")
    A(f"  v_mov_b32 v{X}, s47")
    def emit_dry():
        A(f"  s_cmp_eq_u32 s14, {dry}")
        A("  s_cbranch_scc0 L_nodry")
        A("  s_mov_b32 s83, 1")
        A("  s_mov_b64 exec, 0")
        A("  s_branch L_storecode")
        A("L_dryback:")
        A("  s_mov_b64 exec, -1")
        A("L_nodry:")
        A("  s_mov_b32 s83, 0")
    if dry is not None and late: emit_dry()
    if late:
        A("  s_cmp_eq_u32 s44, 2")
        A("  s_cbranch_scc1 L_nolate")
        lds_spin(f"v7 offset:{L_CTL+24}", 4, "late")
        A("L_nolate:")
    A(f"  v_mov_b32 v{T+2}, 1")
    A("  s_waitcnt lgkmcnt(0)")
    A("  s_mov_b64 exec, 1")
    A(f"  ds_add_rtn_u32 v{T+3}, v{X}, v{T+2} offset:{L_CTL}")
    A("  s_waitcnt lgkmcnt(0)")
    A("  s_mov_b64 exec, -1")
    A(f"  v_readfirstlane_b32 s41, v{T+3}")
    A("  s_cmp_eq_u32 s41, 3")
    A("  s_cbranch_scc0 L_nopub")
    A(f"  s_lshl_b32 s47, s44, 10            ; g*1024")
    A(f"  v_lshl_add_u32 v{T+1}, v3, 2, s47")
    for q in range(4): A(f"  ds_read_b32 v{T+4+q}, v{T+1} offset:{L_SLOT + 256*q}")
    A("  s_waitcnt lgkmcnt(0)")
    A(f"  v_add_f32 v{T+4}, v{T+4}, v{T+5}")
    A(f"  v_add_f32 v{T+6}, v{T+6}, v{T+7}")
    A(f"  s_lshl_b32 s40, s44, 17            ; g*131072")
    A(f"  s_add_u32 s40, s40, s39")
    A(f"  v_add_f32 v{T+4}, v{T+4}, v{T+6}")
    A(f"  v_mov_b32 v{T+5}, s56")
    A(f"  buffer_store_dwordx2 v[{T+4}:{T+5}], v2, s[28:31], s40 offen {pubf}")
    A("L_nopub:")
    stamp(3)
    if stop == 2:
        for i in (4,5,6): stamp(i)
        A("  s_branch L_fin")
    if dry is not None and not late: emit_dry()
    if nored: A("  s_branch L_nored")
    A("  s_cmp_lt_u32 s2, 24")
    A("  s_cbranch_scc0 L_nored")
    A("  s_lshr_b32 s48, s2, 3              ; tg")
    if late or semi: A("  s_mov_b32 s49, s48")
    else: A("  s_and_b32 s49, s48, 2")
    A("  s_cmp_eq_u32 s44, s49")
    A("  s_cbranch_scc0 L_nored")
    A(f"  buffer_load_ushort v{X+1}, off, s[32:35], 0")
    if semi:
        A("  s_cmp_eq_u32 s44, 2")
        A("  s_cbranch_scc1 L_semi_r")
        lds_spin(f"v7 offset:{L_CTL+24}", 4, "semr")
        A("L_semi_r:")
    if rwait:
        A("  s_lshl_b32 s49, s48, 2")
        A(f"  v_mov_b32 v{X+4}, s49")
        lds_spin(f"v{X+4} offset:{L_CTL}", 4, "rw")
    if half:
        A("  s_and_b32 s49, s2, 7               ; i")
        A("  s_lshl_b32 s50, s48, 17")
        A("  s_lshl_b32 s51, s49, 6")
        A("  s_add_u32 s50, s50, s51")
        A("  s_lshl_b32 s51, s45, 15")
        A("  s_add_u32 s50, s50, s51            ; tg*131072 + i*64 + q*32768")
        for m in range(1,4): A(f"  s_add_u32 s{56+m}, s50, {8192*m}")
        A(f"  v_lshrrev_b32 v{X+2}, 2, v3")
        A(f"  v_lshlrev_b32 v{X+2}, 9, v{X+2}")
        A(f"  v_and_b32 v{X+3}, 3, v3")
        A(f"  v_lshl_add_u32 v{X+2}, v{X+3}, 4, v{X+2}   ; (l>>2)*512 + (l&3)*16")
        for _ in range(rdelay): A("  s_sleep 32")
        A("  s_mov_b32 s42, 0")
        A("L_rpoll:")
        for m in range(4):
            A(f"  buffer_load_dwordx4 v[{T+4*m}:{T+4*m+3}], v{X+2}, s[28:31], s{50 if m==0 else 56+m} offen {rpf}")
        A("  s_waitcnt vmcnt(0)")
        for m in range(8): A(f"  v_xor_b32 v{T+2*m+1}, s56, v{T+2*m+1}")
        A(f"  v_or3_b32 v{X+3}, v{T+1}, v{T+3}, v{T+5}")
        A(f"  v_or3_b32 v{X+3}, v{X+3}, v{T+7}, v{T+9}")
        A(f"  v_or3_b32 v{X+3}, v{X+3}, v{T+11}, v{T+13}")
        A(f"  v_or_b32 v{X+3}, v{X+3}, v{T+15}")
        A(f"  v_cmp_ne_u32 vcc, 0, v{X+3}")
        A("  s_cbranch_vccz L_rok")
        if rmask: A("  s_mov_b64 exec, vcc")
        if rsleep: A(f"  s_sleep {rsleep}")
        A("  s_add_u32 s42, s42, 1")
        A(f"  s_cmp_lt_u32 s42, {SPIN}")
        A("  s_cbranch_scc1 L_rpoll")
        A("L_rok:")
        if rmask: A("  s_mov_b64 exec, -1")
        stamp(8)
        A(f"  v_add_f32 v{T}, v{T}, v{T+4}")
        A(f"  v_add_f32 v{T+2}, v{T+2}, v{T+6}")
        A(f"  v_add_f32 v{T+8}, v{T+8}, v{T+12}")
        A(f"  v_add_f32 v{T+10}, v{T+10}, v{T+14}")
        A(f"  v_add_f32 v{T}, v{T}, v{T+8}")
        A(f"  v_add_f32 v{T+2}, v{T+2}, v{T+10}")
        for rr in (8, 4):
            A("  s_nop 1")
            A(f"  v_add_f32_dpp v{T}, v{T}, v{T} row_ror:{rr} row_mask:0xf bank_mask:0xf")
            A(f"  v_add_f32_dpp v{T+2}, v{T+2}, v{T+2} row_ror:{rr} row_mask:0xf bank_mask:0xf")
        A("  s_nop 1")
        A(f"  v_permlane32_swap_b32 v{T}, v{T+2}")
        A(f"  v_add_f32 v{T}, v{T}, v{T+2}")
        A(f"  v_mov_b32 v{T+1}, v{T}")
        A("  s_nop 1")
        A(f"  v_permlane16_swap_b32 v{T}, v{T+1}")
        A(f"  v_add_f32 v{T}, v{T}, v{T+1}")
        A(f"  v_and_b32 v{T+1}, 3, v3")
        A(f"  v_lshlrev_b32 v{T+1}, 3, v{T+1}")
        A(f"  v_lshrrev_b32 v{T+2}, 5, v3")
        A(f"  v_lshl_add_u32 v{T+1}, v{T+2}, 2, v{T+1}")
        A(f"  s_lshl_b32 s50, s45, 5")
        A(f"  v_add_u32 v{T+1}, s50, v{T+1}")
        A(f"  v_mov_b32 v{T+2}, 1")
        A("  s_mov_b32 exec_lo, 0xf")
        A("  s_mov_b32 exec_hi, 0xf")
        A(f"  ds_write_b32 v{T+1}, v{T} offset:{L_RED}")
        A("  s_waitcnt lgkmcnt(0)")
        A("  s_mov_b64 exec, 1")
        A(f"  ds_add_rtn_u32 v{T+3}, v7, v{T+2} offset:{L_CTL+48}")
        A("  s_waitcnt lgkmcnt(0)")
        A("  s_mov_b64 exec, -1")
        A(f"  v_readfirstlane_b32 s41, v{T+3}")
        A("  s_cmp_eq_u32 s41, 3")
        A("  s_cbranch_scc0 L_nored")
        A(f"  v_and_b32 v{T+2}, 7, v3")
        A(f"  v_lshlrev_b32 v{T+2}, 2, v{T+2}")
        for q in range(4): A(f"  ds_read_b32 v{T+4+q}, v{T+2} offset:{L_RED + 32*q}")
        A(f"  v_lshlrev_b32 v{X+1}, 16, v{X+1}    ; w as f32")
        A("  s_mov_b32 s52, 0x36800000           ; 2^-18")
        A("  s_mov_b32 s53, 0xbfb8aa3b           ; -log2(e)")
        A("  s_lshl_b32 s50, s2, 7")
        A(f"  s_add_u32 s50, s50, {H2}")
        A("  s_waitcnt lgkmcnt(0)")
        A(f"  v_add_f32 v{T+4}, v{T+4}, v{T+5}")
        A(f"  v_add_f32 v{T+6}, v{T+6}, v{T+7}")
        A(f"  v_add_f32 v{T}, v{T+4}, v{T+6}")
        def rnd(reg):
            A(f"  v_cvt_pk_bf16_f32 v{reg}, v{reg}, v{reg}")
            A(f"  v_and_b32 v{reg}, s36, v{reg}")
        rnd(T)
        A(f"  v_mul_f32 v{T}, s52, v{T}")
        rnd(T)
        A(f"  v_mul_f32 v{T}, v{X+1}, v{T}")
        rnd(T)
        A(f"  v_add_f32 v{T}, 0, v{T}")
        A(f"  v_mul_f32 v{T}, s53, v{T}")
        A(f"  v_exp_f32 v{T}, v{T}")
        A(f"  v_lshlrev_b32 v{T+2}, 3, v3")
        A(f"  v_add_f32 v{T}, 1.0, v{T}")
        A(f"  v_rcp_f32 v{T}, v{T}")
        A(f"  v_mov_b32 v{T+1}, s56")
        rnd(T)
        A(f"  v_mov_b32 v{T+1}, s56")
        A("  s_mov_b64 exec, 0xffff")
        A(f"  buffer_store_dwordx2 v[{T}:{T+1}], v{T+2}, s[28:31], s50 offen sc1")
        stamp(9)
        if ts:
            A("  s_waitcnt vmcnt(0)")
            stamp(10)
        A("  s_mov_b64 exec, -1")
    else:
        A("  s_and_b32 s49, s2, 7               ; i")
        A("  s_lshl_b32 s49, s49, 2")
        A("  s_add_u32 s49, s49, s45            ; j = 4i+q")
        A("  s_lshl_b32 s50, s48, 17")
        if h1N:
            A("  s_lshl_b32 s51, s49, 4")
            A("  s_add_u32 s50, s50, s51            ; tg*131072 + j*16")
            A(f"  v_lshlrev_b32 v{X+2}, 9, v3         ; lane*512")
            for m in range(1,4): A(f"  s_add_u32 s{56+m}, s50, {32768*m}")
        else:
            A("  s_lshl_b32 s51, s49, 12")
            A("  s_add_u32 s50, s50, s51            ; tg*131072 + j*4096")
            A(f"  v_lshlrev_b32 v{X+2}, 4, v3")
        for _ in range(rdelay): A("  s_sleep 32")
        A("  s_mov_b32 s42, 0")
        A("L_rpoll:")
        for m in range(4):
            if h1N: A(f"  buffer_load_dwordx4 v[{T+4*m}:{T+4*m+3}], v{X+2}, s[28:31], s{50 if m==0 else 56+m} offen {rpf}")
            else: A(f"  buffer_load_dwordx4 v[{T+4*m}:{T+4*m+3}], v{X+2}, s[28:31], s50 offen offset:{1024*m} {rpf}")
        A("  s_waitcnt vmcnt(0)")
        for m in range(8): A(f"  v_xor_b32 v{T+2*m+1}, s56, v{T+2*m+1}")
        A(f"  v_or3_b32 v{X+3}, v{T+1}, v{T+3}, v{T+5}")
        A(f"  v_or3_b32 v{X+3}, v{X+3}, v{T+7}, v{T+9}")
        A(f"  v_or3_b32 v{X+3}, v{X+3}, v{T+11}, v{T+13}")
        A(f"  v_or_b32 v{X+3}, v{X+3}, v{T+15}")
        A(f"  v_cmp_ne_u32 vcc, 0, v{X+3}")
        A("  s_cbranch_vccz L_rok")
        if rmask:
            A("  s_mov_b64 exec, vcc")
        if rsleep: A(f"  s_sleep {rsleep}")
        A("  s_add_u32 s42, s42, 1")
        A(f"  s_cmp_lt_u32 s42, {SPIN}")
        A("  s_cbranch_scc1 L_rpoll")
        A("L_rok:")
        if rmask: A("  s_mov_b64 exec, -1")
        stamp(8)
        if ts: A("  s_mov_b32 s82, s42")
        A(f"  v_add_f32 v{T}, v{T}, v{T+4}")
        A(f"  v_add_f32 v{T+2}, v{T+2}, v{T+6}")
        A(f"  v_add_f32 v{T+8}, v{T+8}, v{T+12}")
        A(f"  v_add_f32 v{T+10}, v{T+10}, v{T+14}")
        A(f"  v_add_f32 v{T}, v{T}, v{T+8}")
        A(f"  v_add_f32 v{T+2}, v{T+2}, v{T+10}")
        A("  s_nop 1")
        A(f"  v_permlane32_swap_b32 v{T}, v{T+2}")
        A(f"  v_add_f32 v{T}, v{T}, v{T+2}")
        A(f"  v_mov_b32 v{T+1}, v{T}")
        A("  s_nop 1")
        A(f"  v_permlane16_swap_b32 v{T}, v{T+1}")
        A(f"  v_add_f32 v{T}, v{T}, v{T+1}")
        for rr in (8, 4, 2, 1):
            A("  s_nop 1")
            A(f"  v_add_f32_dpp v{T}, v{T}, v{T} row_ror:{rr} row_mask:0xf bank_mask:0xf")
        A(f"  v_lshlrev_b32 v{X+1}, 16, v{X+1}    ; w as f32")
        A("  s_mov_b32 s52, 0x36800000           ; 2^-18")
        A("  s_mov_b32 s53, 0xbfb8aa3b           ; -log2(e)")
        def rnd(reg):
            A(f"  v_cvt_pk_bf16_f32 v{reg}, v{reg}, v{reg}")
            A(f"  v_and_b32 v{reg}, s36, v{reg}")
        rnd(T)
        A(f"  v_mul_f32 v{T}, s52, v{T}")
        rnd(T)
        A(f"  v_mul_f32 v{T}, v{X+1}, v{T}")
        rnd(T)
        A(f"  v_add_f32 v{T}, 0, v{T}")
        A(f"  v_mul_f32 v{T}, s53, v{T}")
        A(f"  v_exp_f32 v{T}, v{T}")
        A("  s_nop 0")
        A(f"  v_add_f32 v{T}, 1.0, v{T}")
        A(f"  v_rcp_f32 v{T}, v{T}")
        A("  s_nop 0")
        rnd(T)
        A(f"  v_lshrrev_b32 v{T+1}, 5, v3")
        A(f"  s_lshl_b32 s50, s45, 3")
        A(f"  v_lshl_add_u32 v{T+1}, v{T+1}, 2, s50     ; q*8 + v*4")
        A(f"  v_mov_b32 v{T+2}, 1")
        A("  s_mov_b32 exec_lo, 1")
        A("  s_mov_b32 exec_hi, 1")
        A(f"  ds_write_b32 v{T+1}, v{T} offset:{L_RED}")
        A("  s_waitcnt lgkmcnt(0)")
        A("  s_mov_b64 exec, 1")
        A(f"  ds_add_rtn_u32 v{T+3}, v7, v{T+2} offset:{L_CTL+48}")
        A("  s_waitcnt lgkmcnt(0)")
        A("  s_mov_b64 exec, -1")
        A(f"  v_readfirstlane_b32 s41, v{T+3}")
        A("  s_cmp_eq_u32 s41, 3")
        A("  s_cbranch_scc0 L_nored")
        A(f"  v_and_b32 v{T+2}, 7, v3")
        A(f"  v_lshlrev_b32 v{T+2}, 2, v{T+2}")
        A("  s_mov_b64 exec, 0xffff")
        A(f"  ds_read_b32 v{T}, v{T+2} offset:{L_RED}")
        A(f"  v_lshlrev_b32 v{T+2}, 3, v3")
        A(f"  v_mov_b32 v{T+1}, s56")
        A("  s_lshl_b32 s50, s2, 7")
        A(f"  s_add_u32 s50, s50, {H2}")
        A("  s_waitcnt lgkmcnt(0)")
        A(f"  buffer_store_dwordx2 v[{T}:{T+1}], v{T+2}, s[28:31], s50 offen sc1")
        stamp(9)
        if ts:
            A("  s_waitcnt vmcnt(0)")
            stamp(10)
        A("  s_mov_b64 exec, -1")
    A("L_nored:")
    if nopoll:
        for i in (4,5,6): stamp(i)
        A("  s_branch L_fin")
    A("  s_cmp_eq_u32 s45, 3")
    A("  s_cbranch_scc0 L_nopoll")
    if semi:
        A("  s_cmp_eq_u32 s44, 2")
        A("  s_cbranch_scc1 L_semi_p")
        lds_spin(f"v7 offset:{L_CTL+24}", 4, "semp")
        A("L_semi_p:")
    A(f"  v_lshrrev_b32 v{X+2}, 3, v3")
    A(f"  v_lshlrev_b32 v{X+2}, 7, v{X+2}")
    A(f"  v_and_b32 v{X+3}, 7, v3")
    A(f"  v_lshl_add_u32 v{X+2}, v{X+3}, 3, v{X+2}   ; (l>>3)*128 + (l&7)*8")
    A("  s_lshl_b32 s50, s44, 10")
    A(f"  s_add_u32 s50, s50, {H2}")
    for _ in range(wdelay): A("  s_sleep 32")
    A("  s_mov_b32 s42, 0")
    A("L_wpoll:")
    A(f"  buffer_load_dwordx2 v[{T}:{T+1}], v{X+2}, s[28:31], s50 offen {wpf}")
    A("  s_waitcnt vmcnt(0)")
    A(f"  v_cmp_ne_u32 vcc, s56, v{T+1}")
    A("  s_cbranch_vccz L_wok")
    if sleep_poll: A(f"  s_sleep {sleep_poll}")
    A("  s_add_u32 s42, s42, 1")
    A(f"  s_cmp_lt_u32 s42, {SPIN}")
    A("  s_cbranch_scc1 L_wpoll")
    A("L_wok:")
    A(f"  v_lshl_add_u32 v{T+1}, v5, 3, v4")
    A(f"  v_lshlrev_b32 v{T+1}, 2, v{T+1}")
    A("  s_lshl_b32 s50, s44, 8")
    A(f"  v_add_u32 v{T+1}, s50, v{T+1}")
    A(f"  ds_write_b32 v{T+1}, v{T} offset:{L_S}")
    A(f"  v_mov_b32 v{T+2}, 1")
    A("  s_waitcnt lgkmcnt(0)")
    A("  s_mov_b64 exec, 1")
    A(f"  ds_write_b32 v{X}, v{T+2} offset:{L_CTL+12}")
    A("  s_mov_b64 exec, -1")
    A("  s_cmp_eq_u32 s2, 0")
    A("  s_cbranch_scc0 L_nopoll")
    A("  s_cmp_eq_u32 s44, 2")
    A("  s_cbranch_scc0 L_nopoll")
    lds_spin(f"v7 offset:{L_CTL+12}", 1, "e0")
    lds_spin(f"v7 offset:{L_CTL+16}", 1, "e1")
    A(f"  v_mov_b32 v{T+2}, s56")
    A(f"  s_mov_b32 s50, {EOFF}")
    A("  s_mov_b64 exec, 1")
    A(f"  buffer_store_dword v{T+2}, off, s[28:31], s50 sc1")
    A("  s_mov_b64 exec, -1")
    A("L_nopoll:")
    lds_spin(f"v{X} offset:{L_CTL+12}", 1, "sf")
    stamp(4)
    A("  s_lshl_b32 s50, s44, 8")
    A(f"  v_lshl_add_u32 v{T}, v5, 5, s50     ; g*256 + (l&7)*32")
    A(f"  ds_read_b128 v[{ACC}:{ACC+3}], v{T} offset:{L_S}")
    A(f"  ds_read_b128 v[{ACC+4}:{ACC+7}], v{T} offset:{L_S+16}")
    if chain:
        if schain:
            A("  s_add_u32 s47, s44, 3")
            lds_spin(f"v{X+7} offset:{L_CTL+32}", "s47", "sch")
        else:
            A("  s_cmp_eq_u32 s44, 2")
            A("  s_cbranch_scc1 L_nogate")
            lds_spin(f"v{X+7} offset:{L_CTL+32}", 3, "sch")
            A("L_nogate:")
        if prio: A("  s_setprio 0")
    elif sgate is not None:
        A("  s_cmp_eq_u32 s44, 2")
        A("  s_cbranch_scc1 L_nogate")
        lds_spin(f"v7 offset:{L_CTL+24}", 4, "is")
        lds_spin(f"v7 offset:{L_CTL+12+4*sgate}", 1, "sg")
        if prio: A("  s_setprio 0")
        A("L_nogate:")
    elif late or semi:
        if prio: A("  s_setprio 0")
    elif not early_store:
        A("  s_cmp_eq_u32 s44, 2")
        A("  s_cbranch_scc1 L_nogate")
        lds_spin(f"v7 offset:{L_CTL+24}", 4, "is")
        if prio: A("  s_setprio 0")
        A("L_nogate:")
    A("  s_mov_b32 s38, s37")
    A("  s_waitcnt lgkmcnt(0)")
    stamp(5)
    if stop == 3:
        if chain and schain:
            A(f"  v_mov_b32 v{T}, 1")
            A("  s_mov_b64 exec, 1")
            A(f"  ds_add_u32 v{X+7}, v{T} offset:{L_CTL+32}")
            A("  s_mov_b64 exec, -1")
        stamp(6)
        A("  s_branch L_fin")
    if dry is not None: A("L_storecode:")
    for k in range(NQ):
        r = DATA + 4 * k
        for d in range(4):
            t0 = T + 2 * d
            A(f"  v_lshlrev_b32 v{t0}, 16, v{r+d}")
            A(f"  v_and_b32 v{t0+1}, s36, v{r+d}")
            if pk:
                A(f"  v_pk_mul_f32 v[{t0}:{t0+1}], v[{t0}:{t0+1}], v[{ACC+2*d}:{ACC+2*d+1}]")
            else:
                A(f"  v_mul_f32 v{t0}, v{t0}, v{ACC+2*d}")
                A(f"  v_mul_f32 v{t0+1}, v{t0+1}, v{ACC+2*d+1}")
        for d in range(4):
            t0 = T + 2 * d
            A(f"  v_cvt_pk_bf16_f32 v{r+d}, v{t0}, v{t0+1}")
        if swin and k >= swin: A(f"  s_waitcnt vmcnt({swin-1})")
        if dry is not None: A(f"  s_cbranch_execz L_sk{k}")
        if stride < 4096:
            off = (k & 1) * stride
            A(f"  buffer_store_dwordx4 v[{r}:{r+3}], v1, s[20:23], s38 offen offset:{off} {stf}".rstrip())
            if dry is not None: A(f"L_sk{k}:")
            if (k & 1) and k != NQ - 1: A("  s_add_u32 s38, s38, s46")
        else:
            A(f"  buffer_store_dwordx4 v[{r}:{r+3}], v1, s[20:23], s38 offen {stf}".rstrip())
            if dry is not None: A(f"L_sk{k}:")
            if k != NQ - 1: A("  s_add_u32 s38, s38, s46")
    if dry is not None:
        A("  s_cmp_eq_u32 s83, 1")
        A("  s_cbranch_scc1 L_dryback")
    if chain and schain:
        A(f"  v_mov_b32 v{T}, 1")
        A("  s_mov_b64 exec, 1")
        A(f"  ds_add_u32 v{X+7}, v{T} offset:{L_CTL+32}")
        A("  s_mov_b64 exec, -1")
    stamp(6)
    A("L_fin:")
    if ts and meas:
        a, b, M = meas
        A("  s_waitcnt vmcnt(0)")
        stamp(7)
        A("  s_waitcnt lgkmcnt(0)")
        A("  s_mul_i32 s15, s2, 12"); A("  s_add_u32 s15, s15, s14")
        A(f"  s_cmp_eq_u32 s15, {meas_wave[0]}")
        A("  s_cbranch_scc0 L_end")
        A(f"  s_sub_u32 s46, s{60+2*b}, s{60+2*a}")
        A(f"  s_mul_i32 s46, s46, {M}")
        A("  s_min_u32 s46, s46, 200000")
        A("L_spin:")
        A("  s_memrealtime s[48:49]")
        A("  s_waitcnt lgkmcnt(0)")
        A("  s_sub_u32 s47, s48, s74")
        A("  s_cmp_lt_u32 s47, s46")
        A("  s_cbranch_scc1 L_spin")
    elif ts:
        A("  s_waitcnt vmcnt(0)")
        stamp(7)
        A("  s_getreg_b32 s50, hwreg(HW_REG_XCC_ID)")
        A("  s_and_b32 s50, s50, 0xf")
        A("  s_waitcnt lgkmcnt(0)")
        A("  s_mov_b64 exec, 1")
        A("  s_mul_i32 s15, s2, 12"); A("  s_add_u32 s15, s15, s14")
        A(f"  s_mul_i32 s43, s15, 48")
        A(f"  s_add_u32 s43, s43, {TSOFF}")
        for i in range(8):
            A(f"  v_mov_b32 v{T+i}, s{60+2*i}")
            A(f"  buffer_store_dword v{T+i}, off, s[28:31], s43 offset:{4*i}")
        A(f"  v_mov_b32 v{T+8}, s50")
        A(f"  buffer_store_dword v{T+8}, off, s[28:31], s43 offset:32")
        for i in (8,9,10):
            A(f"  v_mov_b32 v{T+i+1}, s{60+2*i}")
            A(f"  buffer_store_dword v{T+i+1}, off, s[28:31], s43 offset:{4*(i+1)}")
    A("L_end:")
    A("  s_endpgm")
    A('.section .rodata,"a"'); A(".p2align 6"); A(f".amdhsa_kernel {NAME}")
    A("  .amdhsa_next_free_vgpr 168"); A("  .amdhsa_next_free_sgpr 96"); A("  .amdhsa_accum_offset 168")
    A("  .amdhsa_group_segment_fixed_size 0"); A("  .amdhsa_kernarg_size 40"); A("  .amdhsa_user_sgpr_count 2")
    A("  .amdhsa_user_sgpr_kernarg_segment_ptr 1"); A("  .amdhsa_system_sgpr_workgroup_id_x 1"); A("  .amdhsa_float_denorm_mode_32 3")
    A(".end_amdhsa_kernel")
    return "\n".join(L) + "\n"
meas_wave = [0]
if __name__ == "__main__":
    ap = argparse.ArgumentParser()
    ap.add_argument("-o", default="-"); ap.add_argument("--layout", default="A"); ap.add_argument("--ldf", default="nt"); ap.add_argument("--stf", default="sc1")
    ap.add_argument("--ts", action="store_true"); ap.add_argument("--swin", type=int, default=0); ap.add_argument("--noprio", action="store_true")
    ap.add_argument("--meas", default=None); ap.add_argument("--mw", type=int, default=0); ap.add_argument("--sp", type=int, default=4); ap.add_argument("--sl", type=int, default=1)
    ap.add_argument("--early", action="store_true"); ap.add_argument("--gate", default="issue"); ap.add_argument("--pk", action="store_true"); ap.add_argument("--lwin", type=int, default=0); ap.add_argument("--chain", action="store_true"); ap.add_argument("--noschain", action="store_true"); ap.add_argument("--rsleep", type=int, default=8); ap.add_argument("--clrw", type=int, default=8); ap.add_argument("--stop", type=int, default=0); ap.add_argument("--noclr", action="store_true"); ap.add_argument("--clrmode", default="sc"); ap.add_argument("--sigmode", default="atomic"); ap.add_argument("--rpf", default="sc1"); ap.add_argument("--wpf", default="sc1"); ap.add_argument("--pubf", default="sc1"); ap.add_argument("--rdelay", type=int, default=0); ap.add_argument("--wdelay", type=int, default=0); ap.add_argument("--h1T", action="store_true"); ap.add_argument("--warm", default=None); ap.add_argument("--rmask", action="store_true"); ap.add_argument("--rwait", action="store_true"); ap.add_argument("--late", action="store_true"); ap.add_argument("--nored", action="store_true"); ap.add_argument("--nopoll", action="store_true"); ap.add_argument("--half", action="store_true"); ap.add_argument("--sgate", type=int, default=None); ap.add_argument("--semi", action="store_true"); ap.add_argument("--sigk", type=int, default=32); ap.add_argument("--dry", type=int, default=None); ap.add_argument("--prostamp", action="store_true")
    a = ap.parse_args()
    meas_wave[0] = a.mw
    s = gen(layout=a.layout, ldf=a.ldf, stf=a.stf, ts=a.ts, swin=a.swin, prio=not a.noprio, meas=tuple(int(x) for x in a.meas.split(",")) if a.meas else None,
            sleep_poll=a.sp, sleep_lds=a.sl, early_store=a.early, gate=a.gate, pk=a.pk, lwin=a.lwin, chain=a.chain, schain=not a.noschain, rsleep=a.rsleep, clrw=(99 if a.noclr else a.clrw), stop=a.stop, clrmode=a.clrmode, sigmode=a.sigmode, rpf=a.rpf, wpf=a.wpf, pubf=a.pubf, rdelay=a.rdelay, wdelay=a.wdelay, h1N=not a.h1T, warm=a.warm, rmask=a.rmask, rwait=a.rwait, late=a.late, nored=a.nored, nopoll=a.nopoll, half=a.half, sgate=a.sgate, semi=a.semi, sigk=a.sigk, dry=a.dry, prostamp=a.prostamp)
    if a.o == "-": sys.stdout.write(s)
    else: open(a.o, "w").write(s)
```

```python
import sys, argparse
from gen import HEADER, NAME, XBYTES
NWG = 256

def gen(layout="A", ldf="nt", stf="sc1", ts=False, swin=0, prio=True, meas=None, sleep_poll=4, sleep_lds=1, early_store=False, gate="issue", pk=False, lwin=0, chain=False, schain=True, clrw=8, rsleep=8, csleep=8, stop=0, clrmode="sc", sigmode="atomic", rpf="sc1", wpf="sc1", pubf="sc1", rdelay=0, wdelay=0, h1N=True, warm=None, rmask=False, rwait=False, late=False, nored=False, nopoll=False, onepoll=False, half=False, sgate=None, semi=False, sigk=32, dry=None, prostamp=False, swinn=32, fastpro=False, evengate=None, evenswin=0):
    L = []; A = L.append
    NW = 12; NQ = 32
    ACC = 8; T = 16; DATA = 32; X = 160
    H1 = 0; H2 = 3 * 131072; EOFF = H2 + 4096; TSOFF = 512 * 1024 + 65536
    L_SLOT = 0
    L_S = 3072
    L_RED = 3072 + 768
    L_CTL = 3072 + 768 + 128
    lds = L_CTL + 64
    SPIN = "0x20000"
    A(HEADER.rstrip("\n"))
    A(f"; @launch grid=({NWG},1,1) block=({NW*64},1,1) lds={lds}")
    A('.amdgcn_target "amdgcn-amd-amdhsa--gfx950"'); A(".text"); A(f".globl {NAME}"); A(".p2align 8"); A(f".type {NAME},@function"); A(f"{NAME}:")
    def stamp(i):
        if ts: A(f"  s_memrealtime s[{60+2*i}:{61+2*i}]")
    uid = [0]
    def lab(s):
        uid[0] += 1
        return f"L_{s}_{uid[0]}"
    def lds_spin(off, target, name):
        l0, l1 = lab(name), lab(name + "ok")
        A("  s_mov_b32 s42, 0")
        A(f"{l0}:")
        A(f"  ds_read_b32 v{X+6}, {off}")
        A("  s_waitcnt lgkmcnt(0)")
        A(f"  v_readfirstlane_b32 s41, v{X+6}")
        A(f"  s_cmp_ge_u32 s41, {target}")
        A(f"  s_cbranch_scc1 {l1}")
        if sleep_lds: A(f"  s_sleep {sleep_lds}")
        A("  s_add_u32 s42, s42, 1")
        A(f"  s_cmp_lt_u32 s42, 0x400000")
        A(f"  s_cbranch_scc1 {l0}")
        A(f"{l1}:")
    def cnt_check(name):
        l0, l1 = lab(name), lab(name + "ok")
        A("  s_mov_b32 s42, 0")
        A(f"{l0}:")
        A(f"  buffer_load_dword v{X+6}, off, s[24:27], 0 sc1")
        A("  s_waitcnt vmcnt(0)")
        A(f"  v_readfirstlane_b32 s41, v{X+6}")
        A(f"  s_cmp_ge_u32 s41, {NWG}")
        A(f"  s_cbranch_scc1 {l1}")
        if csleep: A(f"  s_sleep {csleep}")
        A("  s_add_u32 s42, s42, 1")
        A(f"  s_cmp_lt_u32 s42, {SPIN}")
        A(f"  s_cbranch_scc1 {l0}")
        A(f"{l1}:")
    A(f"  s_cmp_ge_u32 s2, {NWG}")
    A("  s_cbranch_scc1 L_end")
    stamp(0)
    if ts:
        for i in (8,9,10): A(f"  s_mov_b32 s{60+2*i}, 0")
    A("  s_load_dwordx4 s[4:7], s[0:1], 0")
    A("  s_load_dwordx4 s[8:11], s[0:1], 16")
    A("  s_load_dwordx2 s[12:13], s[0:1], 32")
    A("  v_lshrrev_b32 v2, 6, v0")
    A("  v_and_b32 v3, 63, v0")
    A("  v_lshrrev_b32 v4, 3, v3            ; lane>>3")
    A("  v_readfirstlane_b32 s14, v2        ; w")
    A("  v_and_b32 v5, 7, v3                ; lane&7")
    A("  v_mul_u32_u24 v6, 0x180, v4")
    A("  v_lshl_add_u32 v1, v5, 4, v6")
    A("  v_mov_b32 v7, 0")
    A("  s_mov_b32 s36, 0xffff0000")
    A("  s_lshr_b32 s44, s14, 2             ; g")
    A("  s_and_b32 s45, s14, 3              ; q")
    A("  s_cmp_eq_u32 s14, 0")
    A("  s_cbranch_scc0 L_noinit")
    A("  v_lshlrev_b32 v6, 2, v3")
    A("  s_mov_b64 exec, 0xffff")
    A(f"  ds_write_b32 v6, v7 offset:{L_CTL}")
    A("  s_mov_b64 exec, -1")
    A("L_noinit:")
    if layout == "A":
        A("  s_mul_i32 s37, s2, 393216")
        A("  s_mul_i32 s38, s45, 98304")
        stride = 3072
    elif layout == "C":
        A("  s_mul_i32 s37, s2, 393216")
        A("  s_mul_i32 s38, s45, 3072")
        stride = 4 * 3072
    elif layout == "B":
        A("  s_mul_i32 s37, s2, 12288")
        A("  s_mul_i32 s38, s45, 3072")
        stride = 1024 * 3072
    A("  s_add_u32 s37, s37, s38")
    A("  s_lshl_b32 s38, s44, 7")
    A("  s_add_u32 s37, s37, s38")
    if prio:
        A("  s_cmp_eq_u32 s44, 0"); A("  s_cbranch_scc0 L_p1"); A("  s_setprio 2"); A("  s_branch L_p2")
        A("L_p1:"); A("  s_cmp_eq_u32 s44, 1"); A("  s_cbranch_scc0 L_p2"); A("  s_setprio 1"); A("L_p2:")
    A("  s_waitcnt lgkmcnt(0)")
    if prostamp: stamp(9)
    A("  s_barrier")
    for base, src, n in ((16, 4, XBYTES), (20, 8, XBYTES), (24, 10, 256), (28, 12, 0x100000), (32, 6, 2)):
        A(f"  s_mov_b32 s{base}, s{src}"); A(f"  s_mov_b32 s{base+1}, s{src+1}"); A(f"  s_mov_b32 s{base+2}, {n}"); A(f"  s_mov_b32 s{base+3}, 0x20000")
    A(f"  s_add_u32 s54, s12, {EOFF}")
    A("  s_addc_u32 s55, s13, 0")
    A("  s_load_dword s56, s[54:55], 0")
    if h1N:
        A("  v_lshlrev_b32 v2, 3, v3            ; lane*8")
        A("  s_lshl_b32 s39, s2, 9              ; wg*512")
    else:
        A("  v_lshrrev_b32 v2, 1, v3")
        A("  v_lshlrev_b32 v2, 12, v2")
        A("  v_and_b32 v6, 1, v3")
        A("  v_lshl_add_u32 v2, v6, 3, v2")
        A("  s_lshl_b32 s39, s2, 4              ; wg*16")
    if warm is not None:
        A("  s_cmp_eq_u32 s14, 8")
        A("  s_cbranch_scc0 L_nowarm")
        if prio: A("  s_setprio 3")
        A(f"  v_lshlrev_b32 v{T}, 4, v3")
        A("  s_mul_i32 s40, s2, 1536")
        A(f"  buffer_load_dwordx4 v[{T+4}:{T+7}], v{T}, s[28:31], s40 offen {warm}".rstrip())
        A("  s_mov_b32 exec_hi, 0")
        A(f"  buffer_load_dwordx4 v[{T+8}:{T+11}], v{T}, s[28:31], s40 offen offset:1024 {warm}".rstrip())
        A("  s_mov_b64 exec, -1")
        if prio: A("  s_setprio 0")
        A("L_nowarm:")
    A(f"  s_lshl_b32 s47, s45, 2")
    A(f"  v_mov_b32 v{X+7}, s47")
    if chain:
        A("  s_cmp_eq_u32 s44, 0")
        A("  s_cbranch_scc1 L_nochain")
        lds_spin(f"v{X+7} offset:{L_CTL+32}", "s44", "ch")
        A("L_nochain:")
    if prostamp: stamp(10)
    A("  s_mov_b32 s38, s37")
    A(f"  s_mov_b32 s46, {stride*2 if stride*2 < (1<<31) and stride < 4096 else stride}")
    def accum(k):
        r = DATA + 4 * k
        for d in range(4):
            a0 = ACC + 2 * d
            if k == 0:
                A(f"  v_lshlrev_b32 v{a0}, 16, v{r+d}")
                A(f"  v_and_b32 v{a0+1}, s36, v{r+d}")
            else:
                t0 = T + 2 * d
                A(f"  v_lshlrev_b32 v{t0}, 16, v{r+d}")
                A(f"  v_and_b32 v{t0+1}, s36, v{r+d}")
                A(f"  v_add_f32 v{a0}, v{a0}, v{t0}")
                A(f"  v_add_f32 v{a0+1}, v{a0+1}, v{t0+1}")
    for k in range(NQ):
        r = DATA + 4 * k
        if lwin and k >= lwin: A(f"  s_waitcnt vmcnt({lwin-1})")
        if stride < 4096:
            off = (k & 1) * stride
            A(f"  buffer_load_dwordx4 v[{r}:{r+3}], v1, s[16:19], s38 offen offset:{off} {ldf}".rstrip())
            if (k & 1) and k != NQ - 1: A("  s_add_u32 s38, s38, s46")
        else:
            A(f"  buffer_load_dwordx4 v[{r}:{r+3}], v1, s[16:19], s38 offen {ldf}".rstrip())
            if k != NQ - 1: A("  s_add_u32 s38, s38, s46")
        if lwin and k >= lwin: accum(k - lwin)
        if gate == "issue" and sigk < NQ and k == sigk - 1:
            A("  s_cmp_eq_u32 s44, 2")
            A("  s_cbranch_scc0 L_nosigk")
            A(f"  v_mov_b32 v{X+5}, 1")
            A("  s_mov_b64 exec, 1")
            A(f"  ds_add_u32 v7, v{X+5} offset:{L_CTL+24}")
            A("  s_mov_b64 exec, -1")
            A("L_nosigk:")
    stamp(1)
    A("  s_waitcnt lgkmcnt(0)")
    A("  s_add_u32 s56, s56, 0x9e3779b9     ; tag")
    if chain:
        A(f"  v_mov_b32 v{T}, 1")
        A("  s_mov_b64 exec, 1")
        A(f"  ds_add_u32 v{X+7}, v{T} offset:{L_CTL+32}")
        A("  s_mov_b64 exec, -1")
    A("  s_cmp_eq_u32 s44, 2")
    A("  s_cbranch_scc0 L_notg2")
    if gate == "issue" and sigk >= NQ:
        A(f"  v_mov_b32 v{T}, 1")
        A("  s_mov_b64 exec, 1")
        A(f"  ds_add_u32 v7, v{T} offset:{L_CTL+24}")
        A("  s_mov_b64 exec, -1")
    if prio: A("  s_setprio 3")
    A("L_notg2:")
    for k in range((NQ - lwin) if lwin else 0, NQ):
        A(f"  s_waitcnt vmcnt({NQ - 1 - k})")
        accum(k)
    stamp(2)
    if stop == 1:
        for i in (3,4,5,6): stamp(i)
        A("  s_branch L_fin")
    if gate == "land":
        A("  s_cmp_eq_u32 s44, 2")
        A("  s_cbranch_scc0 L_notg2b")
        A(f"  v_mov_b32 v{T}, 1")
        A("  s_mov_b64 exec, 1")
        A(f"  ds_add_u32 v7, v{T} offset:{L_CTL+24}")
        A("  s_mov_b64 exec, -1")
        A("L_notg2b:")
    A("  s_nop 1")
    for e in range(4): A(f"  v_permlane32_swap_b32 v{ACC+e}, v{ACC+e+4}")
    for e in range(4): A(f"  v_add_f32 v{ACC+e}, v{ACC+e}, v{ACC+e+4}")
    A("  s_nop 1")
    for e in range(2): A(f"  v_permlane16_swap_b32 v{ACC+e}, v{ACC+e+2}")
    for e in range(2): A(f"  v_add_f32 v{ACC+e}, v{ACC+e}, v{ACC+e+2}")
    A("  s_nop 1")
    A(f"  v_add_f32_dpp v{T}, v{ACC}, v{ACC} row_ror:8 row_mask:0xf bank_mask:0x3")
    A(f"  v_add_f32_dpp v{T}, v{ACC+1}, v{ACC+1} row_ror:8 row_mask:0xf bank_mask:0xc")
    A(f"  v_lshlrev_b32 v{T+1}, 2, v0")
    A(f"  ds_write_b32 v{T+1}, v{T} offset:{L_SLOT}")
    A(f"  s_lshl_b32 s47, s44, 2             ; g*4")
    A(f"  v_mov_b32 v{X}, s47")
    def emit_dry():
        A(f"  s_cmp_eq_u32 s14, {dry}")
        A("  s_cbranch_scc0 L_nodry")
        A("  s_mov_b32 s83, 1")
        A("  s_mov_b64 exec, 0")
        A("  s_branch L_storecode")
        A("L_dryback:")
        A("  s_mov_b64 exec, -1")
        A("L_nodry:")
        A("  s_mov_b32 s83, 0")
    if dry is not None and late: emit_dry()
    if late:
        A("  s_cmp_eq_u32 s44, 2")
        A("  s_cbranch_scc1 L_nolate")
        lds_spin(f"v7 offset:{L_CTL+24}", 4, "late")
        A("L_nolate:")
    A(f"  v_mov_b32 v{T+2}, 1")
    A("  s_waitcnt lgkmcnt(0)")
    A("  s_mov_b64 exec, 1")
    A(f"  ds_add_rtn_u32 v{T+3}, v{X}, v{T+2} offset:{L_CTL}")
    A("  s_waitcnt lgkmcnt(0)")
    A("  s_mov_b64 exec, -1")
    A(f"  v_readfirstlane_b32 s41, v{T+3}")
    A("  s_cmp_eq_u32 s41, 3")
    A("  s_cbranch_scc0 L_nopub")
    A(f"  s_lshl_b32 s47, s44, 10            ; g*1024")
    A(f"  v_lshl_add_u32 v{T+1}, v3, 2, s47")
    for q in range(4): A(f"  ds_read_b32 v{T+4+q}, v{T+1} offset:{L_SLOT + 256*q}")
    A("  s_waitcnt lgkmcnt(0)")
    A(f"  v_add_f32 v{T+4}, v{T+4}, v{T+5}")
    A(f"  v_add_f32 v{T+6}, v{T+6}, v{T+7}")
    A(f"  s_lshl_b32 s40, s44, 17            ; g*131072")
    A(f"  s_add_u32 s40, s40, s39")
    A(f"  v_add_f32 v{T+4}, v{T+4}, v{T+6}")
    A(f"  v_mov_b32 v{T+5}, s56")
    A(f"  buffer_store_dwordx2 v[{T+4}:{T+5}], v2, s[28:31], s40 offen {pubf}")
    A("L_nopub:")
    stamp(3)
    if stop == 2:
        for i in (4,5,6): stamp(i)
        A("  s_branch L_fin")
    if dry is not None and not late: emit_dry()
    if nored: A("  s_branch L_nored")
    A("  s_cmp_lt_u32 s2, 24")
    A("  s_cbranch_scc0 L_nored")
    A("  s_lshr_b32 s48, s2, 3              ; tg")
    if late or semi: A("  s_mov_b32 s49, s48")
    else: A("  s_and_b32 s49, s48, 2")
    A("  s_cmp_eq_u32 s44, s49")
    A("  s_cbranch_scc0 L_nored")
    A(f"  buffer_load_ushort v{X+1}, off, s[32:35], 0")
    if semi:
        A("  s_cmp_eq_u32 s44, 2")
        A("  s_cbranch_scc1 L_semi_r")
        lds_spin(f"v7 offset:{L_CTL+24}", 4, "semr")
        A("L_semi_r:")
    if rwait:
        A("  s_lshl_b32 s49, s48, 2")
        A(f"  v_mov_b32 v{X+4}, s49")
        lds_spin(f"v{X+4} offset:{L_CTL}", 4, "rw")
    if half:
        A("  s_and_b32 s49, s2, 7               ; i")
        A("  s_lshl_b32 s50, s48, 17")
        A("  s_lshl_b32 s51, s49, 6")
        A("  s_add_u32 s50, s50, s51")
        A("  s_lshl_b32 s51, s45, 15")
        A("  s_add_u32 s50, s50, s51            ; tg*131072 + i*64 + q*32768")
        for m in range(1,4): A(f"  s_add_u32 s{56+m}, s50, {8192*m}")
        A(f"  v_lshrrev_b32 v{X+2}, 2, v3")
        A(f"  v_lshlrev_b32 v{X+2}, 9, v{X+2}")
        A(f"  v_and_b32 v{X+3}, 3, v3")
        A(f"  v_lshl_add_u32 v{X+2}, v{X+3}, 4, v{X+2}   ; (l>>2)*512 + (l&3)*16")
        for _ in range(rdelay): A("  s_sleep 32")
        A("  s_mov_b32 s42, 0")
        A("L_rpoll:")
        for m in range(4):
            A(f"  buffer_load_dwordx4 v[{T+4*m}:{T+4*m+3}], v{X+2}, s[28:31], s{50 if m==0 else 56+m} offen {rpf}")
        A("  s_waitcnt vmcnt(0)")
        for m in range(8): A(f"  v_xor_b32 v{T+2*m+1}, s56, v{T+2*m+1}")
        A(f"  v_or3_b32 v{X+3}, v{T+1}, v{T+3}, v{T+5}")
        A(f"  v_or3_b32 v{X+3}, v{X+3}, v{T+7}, v{T+9}")
        A(f"  v_or3_b32 v{X+3}, v{X+3}, v{T+11}, v{T+13}")
        A(f"  v_or_b32 v{X+3}, v{X+3}, v{T+15}")
        A(f"  v_cmp_ne_u32 vcc, 0, v{X+3}")
        A("  s_cbranch_vccz L_rok")
        if rmask: A("  s_mov_b64 exec, vcc")
        if rsleep: A(f"  s_sleep {rsleep}")
        A("  s_add_u32 s42, s42, 1")
        A(f"  s_cmp_lt_u32 s42, {SPIN}")
        A("  s_cbranch_scc1 L_rpoll")
        A("L_rok:")
        if rmask: A("  s_mov_b64 exec, -1")
        stamp(8)
        A(f"  v_add_f32 v{T}, v{T}, v{T+4}")
        A(f"  v_add_f32 v{T+2}, v{T+2}, v{T+6}")
        A(f"  v_add_f32 v{T+8}, v{T+8}, v{T+12}")
        A(f"  v_add_f32 v{T+10}, v{T+10}, v{T+14}")
        A(f"  v_add_f32 v{T}, v{T}, v{T+8}")
        A(f"  v_add_f32 v{T+2}, v{T+2}, v{T+10}")
        for rr in (8, 4):
            A("  s_nop 1")
            A(f"  v_add_f32_dpp v{T}, v{T}, v{T} row_ror:{rr} row_mask:0xf bank_mask:0xf")
            A(f"  v_add_f32_dpp v{T+2}, v{T+2}, v{T+2} row_ror:{rr} row_mask:0xf bank_mask:0xf")
        A("  s_nop 1")
        A(f"  v_permlane32_swap_b32 v{T}, v{T+2}")
        A(f"  v_add_f32 v{T}, v{T}, v{T+2}")
        A(f"  v_mov_b32 v{T+1}, v{T}")
        A("  s_nop 1")
        A(f"  v_permlane16_swap_b32 v{T}, v{T+1}")
        A(f"  v_add_f32 v{T}, v{T}, v{T+1}")
        A(f"  v_and_b32 v{T+1}, 3, v3")
        A(f"  v_lshlrev_b32 v{T+1}, 3, v{T+1}")
        A(f"  v_lshrrev_b32 v{T+2}, 5, v3")
        A(f"  v_lshl_add_u32 v{T+1}, v{T+2}, 2, v{T+1}")
        A(f"  s_lshl_b32 s50, s45, 5")
        A(f"  v_add_u32 v{T+1}, s50, v{T+1}")
        A(f"  v_mov_b32 v{T+2}, 1")
        A("  s_mov_b32 exec_lo, 0xf")
        A("  s_mov_b32 exec_hi, 0xf")
        A(f"  ds_write_b32 v{T+1}, v{T} offset:{L_RED}")
        A("  s_waitcnt lgkmcnt(0)")
        A("  s_mov_b64 exec, 1")
        A(f"  ds_add_rtn_u32 v{T+3}, v7, v{T+2} offset:{L_CTL+48}")
        A("  s_waitcnt lgkmcnt(0)")
        A("  s_mov_b64 exec, -1")
        A(f"  v_readfirstlane_b32 s41, v{T+3}")
        A("  s_cmp_eq_u32 s41, 3")
        A("  s_cbranch_scc0 L_nored")
        A(f"  v_and_b32 v{T+2}, 7, v3")
        A(f"  v_lshlrev_b32 v{T+2}, 2, v{T+2}")
        for q in range(4): A(f"  ds_read_b32 v{T+4+q}, v{T+2} offset:{L_RED + 32*q}")
        A(f"  v_lshlrev_b32 v{X+1}, 16, v{X+1}    ; w as f32")
        A("  s_mov_b32 s52, 0x36800000           ; 2^-18")
        A("  s_mov_b32 s53, 0xbfb8aa3b           ; -log2(e)")
        A("  s_lshl_b32 s50, s2, 7")
        A(f"  s_add_u32 s50, s50, {H2}")
        A("  s_waitcnt lgkmcnt(0)")
        A(f"  v_add_f32 v{T+4}, v{T+4}, v{T+5}")
        A(f"  v_add_f32 v{T+6}, v{T+6}, v{T+7}")
        A(f"  v_add_f32 v{T}, v{T+4}, v{T+6}")
        def rnd(reg):
            A(f"  v_cvt_pk_bf16_f32 v{reg}, v{reg}, v{reg}")
            A(f"  v_and_b32 v{reg}, s36, v{reg}")
        rnd(T)
        A(f"  v_mul_f32 v{T}, s52, v{T}")
        rnd(T)
        A(f"  v_mul_f32 v{T}, v{X+1}, v{T}")
        rnd(T)
        A(f"  v_add_f32 v{T}, 0, v{T}")
        A(f"  v_mul_f32 v{T}, s53, v{T}")
        A(f"  v_exp_f32 v{T}, v{T}")
        A(f"  v_lshlrev_b32 v{T+2}, 3, v3")
        A(f"  v_add_f32 v{T}, 1.0, v{T}")
        A(f"  v_rcp_f32 v{T}, v{T}")
        A(f"  v_mov_b32 v{T+1}, s56")
        rnd(T)
        A(f"  v_mov_b32 v{T+1}, s56")
        A("  s_mov_b64 exec, 0xffff")
        A(f"  buffer_store_dwordx2 v[{T}:{T+1}], v{T+2}, s[28:31], s50 offen sc1")
        stamp(9)
        if ts:
            A("  s_waitcnt vmcnt(0)")
            stamp(10)
        A("  s_mov_b64 exec, -1")
    else:
        A("  s_and_b32 s49, s2, 7               ; i")
        A("  s_lshl_b32 s49, s49, 2")
        A("  s_add_u32 s49, s49, s45            ; j = 4i+q")
        A("  s_lshl_b32 s50, s48, 17")
        if h1N:
            A("  s_lshl_b32 s51, s49, 4")
            A("  s_add_u32 s50, s50, s51            ; tg*131072 + j*16")
            A(f"  v_lshlrev_b32 v{X+2}, 9, v3         ; lane*512")
            for m in range(1,4): A(f"  s_add_u32 s{56+m}, s50, {32768*m}")
        else:
            A("  s_lshl_b32 s51, s49, 12")
            A("  s_add_u32 s50, s50, s51            ; tg*131072 + j*4096")
            A(f"  v_lshlrev_b32 v{X+2}, 4, v3")
        for _ in range(rdelay): A("  s_sleep 32")
        A("  s_mov_b32 s42, 0")
        A("L_rpoll:")
        for m in range(4):
            if h1N: A(f"  buffer_load_dwordx4 v[{T+4*m}:{T+4*m+3}], v{X+2}, s[28:31], s{50 if m==0 else 56+m} offen {rpf}")
            else: A(f"  buffer_load_dwordx4 v[{T+4*m}:{T+4*m+3}], v{X+2}, s[28:31], s50 offen offset:{1024*m} {rpf}")
        A("  s_waitcnt vmcnt(0)")
        for m in range(8): A(f"  v_xor_b32 v{T+2*m+1}, s56, v{T+2*m+1}")
        A(f"  v_or3_b32 v{X+3}, v{T+1}, v{T+3}, v{T+5}")
        A(f"  v_or3_b32 v{X+3}, v{X+3}, v{T+7}, v{T+9}")
        A(f"  v_or3_b32 v{X+3}, v{X+3}, v{T+11}, v{T+13}")
        A(f"  v_or_b32 v{X+3}, v{X+3}, v{T+15}")
        A(f"  v_cmp_ne_u32 vcc, 0, v{X+3}")
        A("  s_cbranch_vccz L_rok")
        if rmask:
            A("  s_mov_b64 exec, vcc")
        if rsleep: A(f"  s_sleep {rsleep}")
        A("  s_add_u32 s42, s42, 1")
        A(f"  s_cmp_lt_u32 s42, {SPIN}")
        A("  s_cbranch_scc1 L_rpoll")
        A("L_rok:")
        if rmask: A("  s_mov_b64 exec, -1")
        stamp(8)
        if ts: A("  s_mov_b32 s82, s42")
        A(f"  v_add_f32 v{T}, v{T}, v{T+4}")
        A(f"  v_add_f32 v{T+2}, v{T+2}, v{T+6}")
        A(f"  v_add_f32 v{T+8}, v{T+8}, v{T+12}")
        A(f"  v_add_f32 v{T+10}, v{T+10}, v{T+14}")
        A(f"  v_add_f32 v{T}, v{T}, v{T+8}")
        A(f"  v_add_f32 v{T+2}, v{T+2}, v{T+10}")
        A("  s_nop 1")
        A(f"  v_permlane32_swap_b32 v{T}, v{T+2}")
        A(f"  v_add_f32 v{T}, v{T}, v{T+2}")
        A(f"  v_mov_b32 v{T+1}, v{T}")
        A("  s_nop 1")
        A(f"  v_permlane16_swap_b32 v{T}, v{T+1}")
        A(f"  v_add_f32 v{T}, v{T}, v{T+1}")
        for rr in (8, 4, 2, 1):
            A("  s_nop 1")
            A(f"  v_add_f32_dpp v{T}, v{T}, v{T} row_ror:{rr} row_mask:0xf bank_mask:0xf")
        A(f"  v_lshlrev_b32 v{X+1}, 16, v{X+1}    ; w as f32")
        A("  s_mov_b32 s52, 0x36800000           ; 2^-18")
        A("  s_mov_b32 s53, 0xbfb8aa3b           ; -log2(e)")
        def rnd(reg):
            A(f"  v_cvt_pk_bf16_f32 v{reg}, v{reg}, v{reg}")
            A(f"  v_and_b32 v{reg}, s36, v{reg}")
        rnd(T)
        A(f"  v_mul_f32 v{T}, s52, v{T}")
        rnd(T)
        A(f"  v_mul_f32 v{T}, v{X+1}, v{T}")
        rnd(T)
        A(f"  v_add_f32 v{T}, 0, v{T}")
        A(f"  v_mul_f32 v{T}, s53, v{T}")
        A(f"  v_exp_f32 v{T}, v{T}")
        A("  s_nop 0")
        A(f"  v_add_f32 v{T}, 1.0, v{T}")
        A(f"  v_rcp_f32 v{T}, v{T}")
        A("  s_nop 0")
        rnd(T)
        A(f"  v_lshrrev_b32 v{T+1}, 5, v3")
        A(f"  s_lshl_b32 s50, s45, 3")
        A(f"  v_lshl_add_u32 v{T+1}, v{T+1}, 2, s50     ; q*8 + v*4")
        A(f"  v_mov_b32 v{T+2}, 1")
        A("  s_mov_b32 exec_lo, 1")
        A("  s_mov_b32 exec_hi, 1")
        A(f"  ds_write_b32 v{T+1}, v{T} offset:{L_RED}")
        A("  s_waitcnt lgkmcnt(0)")
        A("  s_mov_b64 exec, 1")
        A(f"  ds_add_rtn_u32 v{T+3}, v7, v{T+2} offset:{L_CTL+48}")
        A("  s_waitcnt lgkmcnt(0)")
        A("  s_mov_b64 exec, -1")
        A(f"  v_readfirstlane_b32 s41, v{T+3}")
        A("  s_cmp_eq_u32 s41, 3")
        A("  s_cbranch_scc0 L_nored")
        A(f"  v_and_b32 v{T+2}, 7, v3")
        A(f"  v_lshlrev_b32 v{T+2}, 2, v{T+2}")
        A("  s_mov_b64 exec, 0xffff")
        A(f"  ds_read_b32 v{T}, v{T+2} offset:{L_RED}")
        A(f"  v_lshlrev_b32 v{T+2}, 3, v3")
        A(f"  v_mov_b32 v{T+1}, s56")
        A("  s_lshl_b32 s50, s2, 7")
        A(f"  s_add_u32 s50, s50, {H2}")
        A("  s_waitcnt lgkmcnt(0)")
        A(f"  buffer_store_dwordx2 v[{T}:{T+1}], v{T+2}, s[28:31], s50 offen sc1")
        stamp(9)
        if ts:
            A("  s_waitcnt vmcnt(0)")
            stamp(10)
        A("  s_mov_b64 exec, -1")
    A("L_nored:")
    if nopoll:
        for i in (4,5,6): stamp(i)
        A("  s_branch L_fin")
    A("  s_cmp_eq_u32 s45, 3")
    A("  s_cbranch_scc0 L_nopoll")
    if semi:
        A("  s_cmp_eq_u32 s44, 2")
        A("  s_cbranch_scc1 L_semi_p")
        lds_spin(f"v7 offset:{L_CTL+24}", 4, "semp")
        A("L_semi_p:")
    A(f"  v_lshrrev_b32 v{X+2}, 3, v3")
    A(f"  v_lshlrev_b32 v{X+2}, 7, v{X+2}")
    A(f"  v_and_b32 v{X+3}, 7, v3")
    A(f"  v_lshl_add_u32 v{X+2}, v{X+3}, 3, v{X+2}   ; (l>>3)*128 + (l&7)*8")
    A("  s_lshl_b32 s50, s44, 10")
    A(f"  s_add_u32 s50, s50, {H2}")
    for _ in range(wdelay): A("  s_sleep 32")
    A("  s_mov_b32 s42, 0")
    A("L_wpoll:")
    A(f"  buffer_load_dwordx2 v[{T}:{T+1}], v{X+2}, s[28:31], s50 offen {wpf}")
    A("  s_waitcnt vmcnt(0)")
    A(f"  v_cmp_ne_u32 vcc, s56, v{T+1}")
    A("  s_cbranch_vccz L_wok")
    if sleep_poll: A(f"  s_sleep {sleep_poll}")
    A("  s_add_u32 s42, s42, 1")
    A(f"  s_cmp_lt_u32 s42, {SPIN}")
    A("  s_cbranch_scc1 L_wpoll")
    A("L_wok:")
    A(f"  v_lshl_add_u32 v{T+1}, v5, 3, v4")
    A(f"  v_lshlrev_b32 v{T+1}, 2, v{T+1}")
    A("  s_lshl_b32 s50, s44, 8")
    A(f"  v_add_u32 v{T+1}, s50, v{T+1}")
    A(f"  ds_write_b32 v{T+1}, v{T} offset:{L_S}")
    A(f"  v_mov_b32 v{T+2}, 1")
    A("  s_waitcnt lgkmcnt(0)")
    A("  s_mov_b64 exec, 1")
    A(f"  ds_write_b32 v{X}, v{T+2} offset:{L_CTL+12}")
    A("  s_mov_b64 exec, -1")
    A("  s_cmp_eq_u32 s2, 0")
    A("  s_cbranch_scc0 L_nopoll")
    A("  s_cmp_eq_u32 s44, 2")
    A("  s_cbranch_scc0 L_nopoll")
    lds_spin(f"v7 offset:{L_CTL+12}", 1, "e0")
    lds_spin(f"v7 offset:{L_CTL+16}", 1, "e1")
    A(f"  v_mov_b32 v{T+2}, s56")
    A(f"  s_mov_b32 s50, {EOFF}")
    A("  s_mov_b64 exec, 1")
    A(f"  buffer_store_dword v{T+2}, off, s[28:31], s50 sc1")
    A("  s_mov_b64 exec, -1")
    A("L_nopoll:")
    lds_spin(f"v{X} offset:{L_CTL+12}", 1, "sf")
    stamp(4)
    A("  s_lshl_b32 s50, s44, 8")
    A(f"  v_lshl_add_u32 v{T}, v5, 5, s50     ; g*256 + (l&7)*32")
    A(f"  ds_read_b128 v[{ACC}:{ACC+3}], v{T} offset:{L_S}")
    A(f"  ds_read_b128 v[{ACC+4}:{ACC+7}], v{T} offset:{L_S+16}")
    if chain:
        if schain:
            A("  s_add_u32 s47, s44, 3")
            lds_spin(f"v{X+7} offset:{L_CTL+32}", "s47", "sch")
        else:
            A("  s_cmp_eq_u32 s44, 2")
            A("  s_cbranch_scc1 L_nogate")
            lds_spin(f"v{X+7} offset:{L_CTL+32}", 3, "sch")
            A("L_nogate:")
        if prio: A("  s_setprio 0")
    elif sgate is not None:
        A("  s_cmp_eq_u32 s44, 2")
        A("  s_cbranch_scc1 L_nogate")
        lds_spin(f"v7 offset:{L_CTL+24}", 4, "is")
        lds_spin(f"v7 offset:{L_CTL+12+4*sgate}", 1, "sg")
        if prio: A("  s_setprio 0")
        A("L_nogate:")
    elif late or semi:
        if evengate is not None:
            A("  s_getreg_b32 s84, hwreg(HW_REG_XCC_ID)")
            A("  s_and_b32 s84, s84, 1")
            A("  s_cmp_eq_u32 s84, 0")
            A("  s_cbranch_scc0 L_noeven")
            A(f"  s_cmp_lt_u32 s44, {evengate}")
            A("  s_cbranch_scc0 L_noeven")
            lds_spin(f"v7 offset:{L_CTL+12+4*evengate}", 1, "eg")
            A("L_noeven:")
        if prio: A("  s_setprio 0")
    elif not early_store:
        A("  s_cmp_eq_u32 s44, 2")
        A("  s_cbranch_scc1 L_nogate")
        lds_spin(f"v7 offset:{L_CTL+24}", 4, "is")
        if prio: A("  s_setprio 0")
        A("L_nogate:")
    A("  s_mov_b32 s38, s37")
    A("  s_waitcnt lgkmcnt(0)")
    stamp(5)
    if stop == 3:
        if chain and schain:
            A(f"  v_mov_b32 v{T}, 1")
            A("  s_mov_b64 exec, 1")
            A(f"  ds_add_u32 v{X+7}, v{T} offset:{L_CTL+32}")
            A("  s_mov_b64 exec, -1")
        stamp(6)
        A("  s_branch L_fin")
    if evenswin:
        A("  s_getreg_b32 s84, hwreg(HW_REG_XCC_ID)")
        A("  s_and_b32 s84, s84, 1")
        A("  s_xor_b32 s84, s84, 1")
        A("  s_mov_b32 s85, 0")
        A("  s_mov_b64 vcc, s[84:85]")
    if dry is not None: A("L_storecode:")
    for k in range(NQ):
        r = DATA + 4 * k
        for d in range(4):
            t0 = T + 2 * d
            A(f"  v_lshlrev_b32 v{t0}, 16, v{r+d}")
            A(f"  v_and_b32 v{t0+1}, s36, v{r+d}")
            if pk:
                A(f"  v_pk_mul_f32 v[{t0}:{t0+1}], v[{t0}:{t0+1}], v[{ACC+2*d}:{ACC+2*d+1}]")
            else:
                A(f"  v_mul_f32 v{t0}, v{t0}, v{ACC+2*d}")
                A(f"  v_mul_f32 v{t0+1}, v{t0+1}, v{ACC+2*d+1}")
        for d in range(4):
            t0 = T + 2 * d
            A(f"  v_cvt_pk_bf16_f32 v{r+d}, v{t0}, v{t0+1}")
        if swin and k >= swin and k < swinn: A(f"  s_waitcnt vmcnt({swin-1})")
        if evenswin and k >= evenswin:
            A(f"  s_cbranch_vccz L_ew{k}")
            A(f"  s_waitcnt vmcnt({evenswin-1})")
            A(f"L_ew{k}:")
        if dry is not None: A(f"  s_cbranch_execz L_sk{k}")
        if stride < 4096:
            off = (k & 1) * stride
            A(f"  buffer_store_dwordx4 v[{r}:{r+3}], v1, s[20:23], s38 offen offset:{off} {stf}".rstrip())
            if dry is not None: A(f"L_sk{k}:")
            if (k & 1) and k != NQ - 1: A("  s_add_u32 s38, s38, s46")
        else:
            A(f"  buffer_store_dwordx4 v[{r}:{r+3}], v1, s[20:23], s38 offen {stf}".rstrip())
            if dry is not None: A(f"L_sk{k}:")
            if k != NQ - 1: A("  s_add_u32 s38, s38, s46")
    if dry is not None:
        A("  s_cmp_eq_u32 s83, 1")
        A("  s_cbranch_scc1 L_dryback")
    if chain and schain:
        A(f"  v_mov_b32 v{T}, 1")
        A("  s_mov_b64 exec, 1")
        A(f"  ds_add_u32 v{X+7}, v{T} offset:{L_CTL+32}")
        A("  s_mov_b64 exec, -1")
    stamp(6)
    A("L_fin:")
    if ts and meas:
        a, b, M = meas
        A("  s_waitcnt vmcnt(0)")
        stamp(7)
        A("  s_waitcnt lgkmcnt(0)")
        A("  s_mul_i32 s15, s2, 12"); A("  s_add_u32 s15, s15, s14")
        A(f"  s_cmp_eq_u32 s15, {meas_wave[0]}")
        A("  s_cbranch_scc0 L_end")
        A(f"  s_sub_u32 s46, s{60+2*b}, s{60+2*a}")
        A(f"  s_mul_i32 s46, s46, {M}")
        A("  s_min_u32 s46, s46, 200000")
        A("L_spin:")
        A("  s_memrealtime s[48:49]")
        A("  s_waitcnt lgkmcnt(0)")
        A("  s_sub_u32 s47, s48, s74")
        A("  s_cmp_lt_u32 s47, s46")
        A("  s_cbranch_scc1 L_spin")
    elif ts:
        A("  s_waitcnt vmcnt(0)")
        stamp(7)
        A("  s_getreg_b32 s50, hwreg(HW_REG_XCC_ID)")
        A("  s_and_b32 s50, s50, 0xf")
        A("  s_waitcnt lgkmcnt(0)")
        A("  s_mov_b64 exec, 1")
        A("  s_mul_i32 s15, s2, 12"); A("  s_add_u32 s15, s15, s14")
        A(f"  s_mul_i32 s43, s15, 48")
        A(f"  s_add_u32 s43, s43, {TSOFF}")
        for i in range(8):
            A(f"  v_mov_b32 v{T+i}, s{60+2*i}")
            A(f"  buffer_store_dword v{T+i}, off, s[28:31], s43 offset:{4*i}")
        A(f"  v_mov_b32 v{T+8}, s50")
        A(f"  buffer_store_dword v{T+8}, off, s[28:31], s43 offset:32")
        for i in (8,9,10):
            A(f"  v_mov_b32 v{T+i+1}, s{60+2*i}")
            A(f"  buffer_store_dword v{T+i+1}, off, s[28:31], s43 offset:{4*(i+1)}")
    A("L_end:")
    A("  s_endpgm")
    A('.section .rodata,"a"'); A(".p2align 6"); A(f".amdhsa_kernel {NAME}")
    A("  .amdhsa_next_free_vgpr 168"); A("  .amdhsa_next_free_sgpr 96"); A("  .amdhsa_accum_offset 168")
    A("  .amdhsa_group_segment_fixed_size 0"); A("  .amdhsa_kernarg_size 40"); A("  .amdhsa_user_sgpr_count 2")
    A("  .amdhsa_user_sgpr_kernarg_segment_ptr 1"); A("  .amdhsa_system_sgpr_workgroup_id_x 1"); A("  .amdhsa_float_denorm_mode_32 3")
    A(".end_amdhsa_kernel")
    return "\n".join(L) + "\n"
meas_wave = [0]
if __name__ == "__main__":
    ap = argparse.ArgumentParser()
    ap.add_argument("-o", default="-"); ap.add_argument("--layout", default="A"); ap.add_argument("--ldf", default="nt"); ap.add_argument("--stf", default="sc1")
    ap.add_argument("--ts", action="store_true"); ap.add_argument("--swin", type=int, default=0); ap.add_argument("--noprio", action="store_true")
    ap.add_argument("--meas", default=None); ap.add_argument("--mw", type=int, default=0); ap.add_argument("--sp", type=int, default=4); ap.add_argument("--sl", type=int, default=1)
    ap.add_argument("--early", action="store_true"); ap.add_argument("--gate", default="issue"); ap.add_argument("--pk", action="store_true"); ap.add_argument("--lwin", type=int, default=0); ap.add_argument("--chain", action="store_true"); ap.add_argument("--noschain", action="store_true"); ap.add_argument("--rsleep", type=int, default=8); ap.add_argument("--clrw", type=int, default=8); ap.add_argument("--stop", type=int, default=0); ap.add_argument("--noclr", action="store_true"); ap.add_argument("--clrmode", default="sc"); ap.add_argument("--sigmode", default="atomic"); ap.add_argument("--rpf", default="sc1"); ap.add_argument("--wpf", default="sc1"); ap.add_argument("--pubf", default="sc1"); ap.add_argument("--rdelay", type=int, default=0); ap.add_argument("--wdelay", type=int, default=0); ap.add_argument("--h1T", action="store_true"); ap.add_argument("--warm", default=None); ap.add_argument("--rmask", action="store_true"); ap.add_argument("--rwait", action="store_true"); ap.add_argument("--late", action="store_true"); ap.add_argument("--nored", action="store_true"); ap.add_argument("--nopoll", action="store_true"); ap.add_argument("--half", action="store_true"); ap.add_argument("--sgate", type=int, default=None); ap.add_argument("--semi", action="store_true"); ap.add_argument("--sigk", type=int, default=32); ap.add_argument("--dry", type=int, default=None); ap.add_argument("--prostamp", action="store_true"); ap.add_argument("--swinn", type=int, default=32); ap.add_argument("--fastpro", action="store_true"); ap.add_argument("--evengate", type=int, default=None); ap.add_argument("--evenswin", type=int, default=0)
    a = ap.parse_args()
    meas_wave[0] = a.mw
    s = gen(layout=a.layout, ldf=a.ldf, stf=a.stf, ts=a.ts, swin=a.swin, prio=not a.noprio, meas=tuple(int(x) for x in a.meas.split(",")) if a.meas else None,
            sleep_poll=a.sp, sleep_lds=a.sl, early_store=a.early, gate=a.gate, pk=a.pk, lwin=a.lwin, chain=a.chain, schain=not a.noschain, rsleep=a.rsleep, clrw=(99 if a.noclr else a.clrw), stop=a.stop, clrmode=a.clrmode, sigmode=a.sigmode, rpf=a.rpf, wpf=a.wpf, pubf=a.pubf, rdelay=a.rdelay, wdelay=a.wdelay, h1N=not a.h1T, warm=a.warm, rmask=a.rmask, rwait=a.rwait, late=a.late, nored=a.nored, nopoll=a.nopoll, half=a.half, sgate=a.sgate, semi=a.semi, sigk=a.sigk, dry=a.dry, prostamp=a.prostamp, swinn=a.swinn, fastpro=a.fastpro, evengate=a.evengate, evenswin=a.evenswin)
    if a.o == "-": sys.stdout.write(s)
    else: open(a.o, "w").write(s)
```

```python
import sys, argparse
from gen import HEADER, NAME, XBYTES
NWG = 256

def gen(layout="A", ldf="nt", stf="sc1", ts=False, swin=0, prio=True, meas=None, sleep_poll=4, sleep_lds=1, early_store=False, gate="issue", pk=False, lwin=0, chain=False, schain=True, clrw=8, rsleep=8, csleep=8, stop=0, clrmode="sc", sigmode="atomic", rpf="sc1", wpf="sc1", pubf="sc1", rdelay=0, wdelay=0, h1N=True, warm=None, rmask=False, rwait=False, late=False, nored=False, nopoll=False, onepoll=False, half=False, sgate=None, semi=False, sigk=32, dry=None, prostamp=False, swinn=32, fastpro=False, evengate=None, evenswin=0, evenmin=0, evenk0=0):
    L = []; A = L.append
    NW = 12; NQ = 32
    ACC = 8; T = 16; DATA = 32; X = 160
    H1 = 0; H2 = 3 * 131072; EOFF = H2 + 4096; TSOFF = 512 * 1024 + 65536
    L_SLOT = 0
    L_S = 3072
    L_RED = 3072 + 768
    L_CTL = 3072 + 768 + 128
    lds = L_CTL + 64
    SPIN = "0x20000"
    A(HEADER.rstrip("\n"))
    A(f"; @launch grid=({NWG},1,1) block=({NW*64},1,1) lds={lds}")
    A('.amdgcn_target "amdgcn-amd-amdhsa--gfx950"'); A(".text"); A(f".globl {NAME}"); A(".p2align 8"); A(f".type {NAME},@function"); A(f"{NAME}:")
    def stamp(i):
        if ts: A(f"  s_memrealtime s[{60+2*i}:{61+2*i}]")
    uid = [0]
    def lab(s):
        uid[0] += 1
        return f"L_{s}_{uid[0]}"
    def lds_spin(off, target, name):
        l0, l1 = lab(name), lab(name + "ok")
        A("  s_mov_b32 s42, 0")
        A(f"{l0}:")
        A(f"  ds_read_b32 v{X+6}, {off}")
        A("  s_waitcnt lgkmcnt(0)")
        A(f"  v_readfirstlane_b32 s41, v{X+6}")
        A(f"  s_cmp_ge_u32 s41, {target}")
        A(f"  s_cbranch_scc1 {l1}")
        if sleep_lds: A(f"  s_sleep {sleep_lds}")
        A("  s_add_u32 s42, s42, 1")
        A(f"  s_cmp_lt_u32 s42, 0x400000")
        A(f"  s_cbranch_scc1 {l0}")
        A(f"{l1}:")
    def cnt_check(name):
        l0, l1 = lab(name), lab(name + "ok")
        A("  s_mov_b32 s42, 0")
        A(f"{l0}:")
        A(f"  buffer_load_dword v{X+6}, off, s[24:27], 0 sc1")
        A("  s_waitcnt vmcnt(0)")
        A(f"  v_readfirstlane_b32 s41, v{X+6}")
        A(f"  s_cmp_ge_u32 s41, {NWG}")
        A(f"  s_cbranch_scc1 {l1}")
        if csleep: A(f"  s_sleep {csleep}")
        A("  s_add_u32 s42, s42, 1")
        A(f"  s_cmp_lt_u32 s42, {SPIN}")
        A(f"  s_cbranch_scc1 {l0}")
        A(f"{l1}:")
    A(f"  s_cmp_ge_u32 s2, {NWG}")
    A("  s_cbranch_scc1 L_end")
    stamp(0)
    if ts:
        for i in (8,9,10): A(f"  s_mov_b32 s{60+2*i}, 0")
    if fastpro:
        A("  s_load_dwordx2 s[16:17], s[0:1], 0     ; x")
        A("  s_load_dwordx2 s[20:21], s[0:1], 16    ; out")
        A("  s_load_dwordx2 s[28:29], s[0:1], 32    ; ws")
        A("  s_load_dwordx2 s[32:33], s[0:1], 8     ; w")
        A("  v_lshrrev_b32 v2, 6, v0")
        A("  v_and_b32 v3, 63, v0")
        A("  v_lshrrev_b32 v4, 3, v3            ; lane>>3")
        A("  v_readfirstlane_b32 s14, v2        ; w")
        A("  v_and_b32 v5, 7, v3                ; lane&7")
        A("  v_mul_u32_u24 v6, 0x180, v4")
        A("  v_lshl_add_u32 v1, v5, 4, v6")
        A("  v_mov_b32 v7, 0")
        A("  s_lshr_b32 s44, s14, 2             ; g")
        A("  s_and_b32 s45, s14, 3              ; q")
        A(f"  s_mov_b32 s18, {XBYTES}"); A("  s_mov_b32 s19, 0x20000")
        if layout == "A":
            A("  s_mul_i32 s37, s2, 393216"); A("  s_mul_i32 s38, s45, 98304"); stride = 3072
        elif layout == "C":
            A("  s_mul_i32 s37, s2, 393216"); A("  s_mul_i32 s38, s45, 3072"); stride = 4 * 3072
        elif layout == "B":
            A("  s_mul_i32 s37, s2, 12288"); A("  s_mul_i32 s38, s45, 3072"); stride = 1024 * 3072
        A("  s_add_u32 s37, s37, s38")
        A("  s_lshl_b32 s38, s44, 7")
        A("  s_add_u32 s37, s37, s38")
        A("  s_cmp_eq_u32 s14, 0")
        A("  s_cbranch_scc0 L_noinit")
        A("  v_lshlrev_b32 v6, 2, v3")
        A("  s_mov_b64 exec, 0xffff")
        A(f"  ds_write_b32 v6, v7 offset:{L_CTL}")
        A("  s_mov_b64 exec, -1")
        A("  s_waitcnt lgkmcnt(0)")
        A("L_noinit:")
        A("  s_barrier")
        if prio:
            A("  s_cmp_eq_u32 s44, 0"); A("  s_cbranch_scc0 L_p1"); A("  s_setprio 2"); A("  s_branch L_p2")
            A("L_p1:"); A("  s_cmp_eq_u32 s44, 1"); A("  s_cbranch_scc0 L_p2"); A("  s_setprio 1"); A("L_p2:")
        A("  s_mov_b32 s36, 0xffff0000")
        A("  s_waitcnt lgkmcnt(0)")
        if prostamp: stamp(9)
    else:
        A("  s_load_dwordx4 s[4:7], s[0:1], 0")
        A("  s_load_dwordx4 s[8:11], s[0:1], 16")
        A("  s_load_dwordx2 s[12:13], s[0:1], 32")
        A("  v_lshrrev_b32 v2, 6, v0")
        A("  v_and_b32 v3, 63, v0")
        A("  v_lshrrev_b32 v4, 3, v3            ; lane>>3")
        A("  v_readfirstlane_b32 s14, v2        ; w")
        A("  v_and_b32 v5, 7, v3                ; lane&7")
        A("  v_mul_u32_u24 v6, 0x180, v4")
        A("  v_lshl_add_u32 v1, v5, 4, v6")
        A("  v_mov_b32 v7, 0")
        A("  s_mov_b32 s36, 0xffff0000")
        A("  s_lshr_b32 s44, s14, 2             ; g")
        A("  s_and_b32 s45, s14, 3              ; q")
        A("  s_cmp_eq_u32 s14, 0")
        A("  s_cbranch_scc0 L_noinit")
        A("  v_lshlrev_b32 v6, 2, v3")
        A("  s_mov_b64 exec, 0xffff")
        A(f"  ds_write_b32 v6, v7 offset:{L_CTL}")
        A("  s_mov_b64 exec, -1")
        A("L_noinit:")
        if layout == "A":
            A("  s_mul_i32 s37, s2, 393216")
            A("  s_mul_i32 s38, s45, 98304")
            stride = 3072
        elif layout == "C":
            A("  s_mul_i32 s37, s2, 393216")
            A("  s_mul_i32 s38, s45, 3072")
            stride = 4 * 3072
        elif layout == "B":
            A("  s_mul_i32 s37, s2, 12288")
            A("  s_mul_i32 s38, s45, 3072")
            stride = 1024 * 3072
        A("  s_add_u32 s37, s37, s38")
        A("  s_lshl_b32 s38, s44, 7")
        A("  s_add_u32 s37, s37, s38")
        if prio:
            A("  s_cmp_eq_u32 s44, 0"); A("  s_cbranch_scc0 L_p1"); A("  s_setprio 2"); A("  s_branch L_p2")
            A("L_p1:"); A("  s_cmp_eq_u32 s44, 1"); A("  s_cbranch_scc0 L_p2"); A("  s_setprio 1"); A("L_p2:")
        A("  s_waitcnt lgkmcnt(0)")
        if prostamp: stamp(9)
        A("  s_barrier")
        for base, src, n in ((16, 4, XBYTES), (20, 8, XBYTES), (24, 10, 256), (28, 12, 0x100000), (32, 6, 2)):
            A(f"  s_mov_b32 s{base}, s{src}"); A(f"  s_mov_b32 s{base+1}, s{src+1}"); A(f"  s_mov_b32 s{base+2}, {n}"); A(f"  s_mov_b32 s{base+3}, 0x20000")
    def deferred():
        if fastpro:
            A(f"  s_mov_b32 s22, {XBYTES}"); A("  s_mov_b32 s23, 0x20000")
            A("  s_mov_b32 s30, 0x100000"); A("  s_mov_b32 s31, 0x20000")
            A("  s_mov_b32 s34, 2"); A("  s_mov_b32 s35, 0x20000")
            A("  s_mov_b32 s12, s28"); A("  s_mov_b32 s13, s29")
        A(f"  s_add_u32 s54, s12, {EOFF}")
        A("  s_addc_u32 s55, s13, 0")
        A("  s_load_dword s56, s[54:55], 0")
        if h1N:
            A("  v_lshlrev_b32 v2, 3, v3            ; lane*8")
            A("  s_lshl_b32 s39, s2, 9              ; wg*512")
        else:
            A("  v_lshrrev_b32 v2, 1, v3")
            A("  v_lshlrev_b32 v2, 12, v2")
            A("  v_and_b32 v6, 1, v3")
            A("  v_lshl_add_u32 v2, v6, 3, v2")
            A("  s_lshl_b32 s39, s2, 4              ; wg*16")
    if not fastpro: deferred()
    if warm is not None:
        A("  s_cmp_eq_u32 s14, 8")
        A("  s_cbranch_scc0 L_nowarm")
        if prio: A("  s_setprio 3")
        A(f"  v_lshlrev_b32 v{T}, 4, v3")
        A("  s_mul_i32 s40, s2, 1536")
        A(f"  buffer_load_dwordx4 v[{T+4}:{T+7}], v{T}, s[28:31], s40 offen {warm}".rstrip())
        A("  s_mov_b32 exec_hi, 0")
        A(f"  buffer_load_dwordx4 v[{T+8}:{T+11}], v{T}, s[28:31], s40 offen offset:1024 {warm}".rstrip())
        A("  s_mov_b64 exec, -1")
        if prio: A("  s_setprio 0")
        A("L_nowarm:")
    A(f"  s_lshl_b32 s47, s45, 2")
    A(f"  v_mov_b32 v{X+7}, s47")
    if chain:
        A("  s_cmp_eq_u32 s44, 0")
        A("  s_cbranch_scc1 L_nochain")
        lds_spin(f"v{X+7} offset:{L_CTL+32}", "s44", "ch")
        A("L_nochain:")
    if prostamp: stamp(10)
    A("  s_mov_b32 s38, s37")
    A(f"  s_mov_b32 s46, {stride*2 if stride*2 < (1<<31) and stride < 4096 else stride}")
    def accum(k):
        r = DATA + 4 * k
        for d in range(4):
            a0 = ACC + 2 * d
            if k == 0:
                A(f"  v_lshlrev_b32 v{a0}, 16, v{r+d}")
                A(f"  v_and_b32 v{a0+1}, s36, v{r+d}")
            else:
                t0 = T + 2 * d
                A(f"  v_lshlrev_b32 v{t0}, 16, v{r+d}")
                A(f"  v_and_b32 v{t0+1}, s36, v{r+d}")
                A(f"  v_add_f32 v{a0}, v{a0}, v{t0}")
                A(f"  v_add_f32 v{a0+1}, v{a0+1}, v{t0+1}")
    for k in range(NQ):
        r = DATA + 4 * k
        if lwin and k >= lwin: A(f"  s_waitcnt vmcnt({lwin-1})")
        if stride < 4096:
            off = (k & 1) * stride
            A(f"  buffer_load_dwordx4 v[{r}:{r+3}], v1, s[16:19], s38 offen offset:{off} {ldf}".rstrip())
            if (k & 1) and k != NQ - 1: A("  s_add_u32 s38, s38, s46")
        else:
            A(f"  buffer_load_dwordx4 v[{r}:{r+3}], v1, s[16:19], s38 offen {ldf}".rstrip())
            if k != NQ - 1: A("  s_add_u32 s38, s38, s46")
        if lwin and k >= lwin: accum(k - lwin)
        if gate == "issue" and sigk < NQ and k == sigk - 1:
            A("  s_cmp_eq_u32 s44, 2")
            A("  s_cbranch_scc0 L_nosigk")
            A(f"  v_mov_b32 v{X+5}, 1")
            A("  s_mov_b64 exec, 1")
            A(f"  ds_add_u32 v7, v{X+5} offset:{L_CTL+24}")
            A("  s_mov_b64 exec, -1")
            A("L_nosigk:")
    stamp(1)
    if fastpro: deferred()
    else:
        A("  s_waitcnt lgkmcnt(0)")
        A("  s_add_u32 s56, s56, 0x9e3779b9     ; tag")
    if chain:
        A(f"  v_mov_b32 v{T}, 1")
        A("  s_mov_b64 exec, 1")
        A(f"  ds_add_u32 v{X+7}, v{T} offset:{L_CTL+32}")
        A("  s_mov_b64 exec, -1")
    A("  s_cmp_eq_u32 s44, 2")
    A("  s_cbranch_scc0 L_notg2")
    if gate == "issue" and sigk >= NQ:
        A(f"  v_mov_b32 v{T}, 1")
        A("  s_mov_b64 exec, 1")
        A(f"  ds_add_u32 v7, v{T} offset:{L_CTL+24}")
        A("  s_mov_b64 exec, -1")
    if prio: A("  s_setprio 3")
    A("L_notg2:")
    for k in range((NQ - lwin) if lwin else 0, NQ):
        A(f"  s_waitcnt vmcnt({NQ - 1 - k})")
        accum(k)
    stamp(2)
    if fastpro:
        A("  s_waitcnt lgkmcnt(0)")
        A("  s_add_u32 s56, s56, 0x9e3779b9     ; tag")
    if stop == 1:
        for i in (3,4,5,6): stamp(i)
        A("  s_branch L_fin")
    if gate == "land":
        A("  s_cmp_eq_u32 s44, 2")
        A("  s_cbranch_scc0 L_notg2b")
        A(f"  v_mov_b32 v{T}, 1")
        A("  s_mov_b64 exec, 1")
        A(f"  ds_add_u32 v7, v{T} offset:{L_CTL+24}")
        A("  s_mov_b64 exec, -1")
        A("L_notg2b:")
    A("  s_nop 1")
    for e in range(4): A(f"  v_permlane32_swap_b32 v{ACC+e}, v{ACC+e+4}")
    for e in range(4): A(f"  v_add_f32 v{ACC+e}, v{ACC+e}, v{ACC+e+4}")
    A("  s_nop 1")
    for e in range(2): A(f"  v_permlane16_swap_b32 v{ACC+e}, v{ACC+e+2}")
    for e in range(2): A(f"  v_add_f32 v{ACC+e}, v{ACC+e}, v{ACC+e+2}")
    A("  s_nop 1")
    A(f"  v_add_f32_dpp v{T}, v{ACC}, v{ACC} row_ror:8 row_mask:0xf bank_mask:0x3")
    A(f"  v_add_f32_dpp v{T}, v{ACC+1}, v{ACC+1} row_ror:8 row_mask:0xf bank_mask:0xc")
    A(f"  v_lshlrev_b32 v{T+1}, 2, v0")
    A(f"  ds_write_b32 v{T+1}, v{T} offset:{L_SLOT}")
    A(f"  s_lshl_b32 s47, s44, 2             ; g*4")
    A(f"  v_mov_b32 v{X}, s47")
    def emit_dry():
        A(f"  s_cmp_eq_u32 s14, {dry}")
        A("  s_cbranch_scc0 L_nodry")
        A("  s_mov_b32 s83, 1")
        A("  s_mov_b64 exec, 0")
        A("  s_branch L_storecode")
        A("L_dryback:")
        A("  s_mov_b64 exec, -1")
        A("L_nodry:")
        A("  s_mov_b32 s83, 0")
    if dry is not None and late: emit_dry()
    if late:
        A("  s_cmp_eq_u32 s44, 2")
        A("  s_cbranch_scc1 L_nolate")
        lds_spin(f"v7 offset:{L_CTL+24}", 4, "late")
        A("L_nolate:")
    A(f"  v_mov_b32 v{T+2}, 1")
    A("  s_waitcnt lgkmcnt(0)")
    A("  s_mov_b64 exec, 1")
    A(f"  ds_add_rtn_u32 v{T+3}, v{X}, v{T+2} offset:{L_CTL}")
    A("  s_waitcnt lgkmcnt(0)")
    A("  s_mov_b64 exec, -1")
    A(f"  v_readfirstlane_b32 s41, v{T+3}")
    A("  s_cmp_eq_u32 s41, 3")
    A("  s_cbranch_scc0 L_nopub")
    A(f"  s_lshl_b32 s47, s44, 10            ; g*1024")
    A(f"  v_lshl_add_u32 v{T+1}, v3, 2, s47")
    for q in range(4): A(f"  ds_read_b32 v{T+4+q}, v{T+1} offset:{L_SLOT + 256*q}")
    A("  s_waitcnt lgkmcnt(0)")
    A(f"  v_add_f32 v{T+4}, v{T+4}, v{T+5}")
    A(f"  v_add_f32 v{T+6}, v{T+6}, v{T+7}")
    A(f"  s_lshl_b32 s40, s44, 17            ; g*131072")
    A(f"  s_add_u32 s40, s40, s39")
    A(f"  v_add_f32 v{T+4}, v{T+4}, v{T+6}")
    A(f"  v_mov_b32 v{T+5}, s56")
    A(f"  buffer_store_dwordx2 v[{T+4}:{T+5}], v2, s[28:31], s40 offen {pubf}")
    A("L_nopub:")
    stamp(3)
    if stop == 2:
        for i in (4,5,6): stamp(i)
        A("  s_branch L_fin")
    if dry is not None and not late: emit_dry()
    if nored: A("  s_branch L_nored")
    A("  s_cmp_lt_u32 s2, 24")
    A("  s_cbranch_scc0 L_nored")
    A("  s_lshr_b32 s48, s2, 3              ; tg")
    if late or semi: A("  s_mov_b32 s49, s48")
    else: A("  s_and_b32 s49, s48, 2")
    A("  s_cmp_eq_u32 s44, s49")
    A("  s_cbranch_scc0 L_nored")
    A(f"  buffer_load_ushort v{X+1}, off, s[32:35], 0")
    if semi:
        A("  s_cmp_eq_u32 s44, 2")
        A("  s_cbranch_scc1 L_semi_r")
        lds_spin(f"v7 offset:{L_CTL+24}", 4, "semr")
        A("L_semi_r:")
    if rwait:
        A("  s_lshl_b32 s49, s48, 2")
        A(f"  v_mov_b32 v{X+4}, s49")
        lds_spin(f"v{X+4} offset:{L_CTL}", 4, "rw")
    if half:
        A("  s_and_b32 s49, s2, 7               ; i")
        A("  s_lshl_b32 s50, s48, 17")
        A("  s_lshl_b32 s51, s49, 6")
        A("  s_add_u32 s50, s50, s51")
        A("  s_lshl_b32 s51, s45, 15")
        A("  s_add_u32 s50, s50, s51            ; tg*131072 + i*64 + q*32768")
        for m in range(1,4): A(f"  s_add_u32 s{56+m}, s50, {8192*m}")
        A(f"  v_lshrrev_b32 v{X+2}, 2, v3")
        A(f"  v_lshlrev_b32 v{X+2}, 9, v{X+2}")
        A(f"  v_and_b32 v{X+3}, 3, v3")
        A(f"  v_lshl_add_u32 v{X+2}, v{X+3}, 4, v{X+2}   ; (l>>2)*512 + (l&3)*16")
        for _ in range(rdelay): A("  s_sleep 32")
        A("  s_mov_b32 s42, 0")
        A("L_rpoll:")
        for m in range(4):
            A(f"  buffer_load_dwordx4 v[{T+4*m}:{T+4*m+3}], v{X+2}, s[28:31], s{50 if m==0 else 56+m} offen {rpf}")
        A("  s_waitcnt vmcnt(0)")
        for m in range(8): A(f"  v_xor_b32 v{T+2*m+1}, s56, v{T+2*m+1}")
        A(f"  v_or3_b32 v{X+3}, v{T+1}, v{T+3}, v{T+5}")
        A(f"  v_or3_b32 v{X+3}, v{X+3}, v{T+7}, v{T+9}")
        A(f"  v_or3_b32 v{X+3}, v{X+3}, v{T+11}, v{T+13}")
        A(f"  v_or_b32 v{X+3}, v{X+3}, v{T+15}")
        A(f"  v_cmp_ne_u32 vcc, 0, v{X+3}")
        A("  s_cbranch_vccz L_rok")
        if rmask: A("  s_mov_b64 exec, vcc")
        if rsleep: A(f"  s_sleep {rsleep}")
        A("  s_add_u32 s42, s42, 1")
        A(f"  s_cmp_lt_u32 s42, {SPIN}")
        A("  s_cbranch_scc1 L_rpoll")
        A("L_rok:")
        if rmask: A("  s_mov_b64 exec, -1")
        stamp(8)
        A(f"  v_add_f32 v{T}, v{T}, v{T+4}")
        A(f"  v_add_f32 v{T+2}, v{T+2}, v{T+6}")
        A(f"  v_add_f32 v{T+8}, v{T+8}, v{T+12}")
        A(f"  v_add_f32 v{T+10}, v{T+10}, v{T+14}")
        A(f"  v_add_f32 v{T}, v{T}, v{T+8}")
        A(f"  v_add_f32 v{T+2}, v{T+2}, v{T+10}")
        for rr in (8, 4):
            A("  s_nop 1")
            A(f"  v_add_f32_dpp v{T}, v{T}, v{T} row_ror:{rr} row_mask:0xf bank_mask:0xf")
            A(f"  v_add_f32_dpp v{T+2}, v{T+2}, v{T+2} row_ror:{rr} row_mask:0xf bank_mask:0xf")
        A("  s_nop 1")
        A(f"  v_permlane32_swap_b32 v{T}, v{T+2}")
        A(f"  v_add_f32 v{T}, v{T}, v{T+2}")
        A(f"  v_mov_b32 v{T+1}, v{T}")
        A("  s_nop 1")
        A(f"  v_permlane16_swap_b32 v{T}, v{T+1}")
        A(f"  v_add_f32 v{T}, v{T}, v{T+1}")
        A(f"  v_and_b32 v{T+1}, 3, v3")
        A(f"  v_lshlrev_b32 v{T+1}, 3, v{T+1}")
        A(f"  v_lshrrev_b32 v{T+2}, 5, v3")
        A(f"  v_lshl_add_u32 v{T+1}, v{T+2}, 2, v{T+1}")
        A(f"  s_lshl_b32 s50, s45, 5")
        A(f"  v_add_u32 v{T+1}, s50, v{T+1}")
        A(f"  v_mov_b32 v{T+2}, 1")
        A("  s_mov_b32 exec_lo, 0xf")
        A("  s_mov_b32 exec_hi, 0xf")
        A(f"  ds_write_b32 v{T+1}, v{T} offset:{L_RED}")
        A("  s_waitcnt lgkmcnt(0)")
        A("  s_mov_b64 exec, 1")
        A(f"  ds_add_rtn_u32 v{T+3}, v7, v{T+2} offset:{L_CTL+48}")
        A("  s_waitcnt lgkmcnt(0)")
        A("  s_mov_b64 exec, -1")
        A(f"  v_readfirstlane_b32 s41, v{T+3}")
        A("  s_cmp_eq_u32 s41, 3")
        A("  s_cbranch_scc0 L_nored")
        A(f"  v_and_b32 v{T+2}, 7, v3")
        A(f"  v_lshlrev_b32 v{T+2}, 2, v{T+2}")
        for q in range(4): A(f"  ds_read_b32 v{T+4+q}, v{T+2} offset:{L_RED + 32*q}")
        A(f"  v_lshlrev_b32 v{X+1}, 16, v{X+1}    ; w as f32")
        A("  s_mov_b32 s52, 0x36800000           ; 2^-18")
        A("  s_mov_b32 s53, 0xbfb8aa3b           ; -log2(e)")
        A("  s_lshl_b32 s50, s2, 7")
        A(f"  s_add_u32 s50, s50, {H2}")
        A("  s_waitcnt lgkmcnt(0)")
        A(f"  v_add_f32 v{T+4}, v{T+4}, v{T+5}")
        A(f"  v_add_f32 v{T+6}, v{T+6}, v{T+7}")
        A(f"  v_add_f32 v{T}, v{T+4}, v{T+6}")
        def rnd(reg):
            A(f"  v_cvt_pk_bf16_f32 v{reg}, v{reg}, v{reg}")
            A(f"  v_and_b32 v{reg}, s36, v{reg}")
        rnd(T)
        A(f"  v_mul_f32 v{T}, s52, v{T}")
        rnd(T)
        A(f"  v_mul_f32 v{T}, v{X+1}, v{T}")
        rnd(T)
        A(f"  v_add_f32 v{T}, 0, v{T}")
        A(f"  v_mul_f32 v{T}, s53, v{T}")
        A(f"  v_exp_f32 v{T}, v{T}")
        A(f"  v_lshlrev_b32 v{T+2}, 3, v3")
        A(f"  v_add_f32 v{T}, 1.0, v{T}")
        A(f"  v_rcp_f32 v{T}, v{T}")
        A(f"  v_mov_b32 v{T+1}, s56")
        rnd(T)
        A(f"  v_mov_b32 v{T+1}, s56")
        A("  s_mov_b64 exec, 0xffff")
        A(f"  buffer_store_dwordx2 v[{T}:{T+1}], v{T+2}, s[28:31], s50 offen sc1")
        stamp(9)
        if ts:
            A("  s_waitcnt vmcnt(0)")
            stamp(10)
        A("  s_mov_b64 exec, -1")
    else:
        A("  s_and_b32 s49, s2, 7               ; i")
        A("  s_lshl_b32 s49, s49, 2")
        A("  s_add_u32 s49, s49, s45            ; j = 4i+q")
        A("  s_lshl_b32 s50, s48, 17")
        if h1N:
            A("  s_lshl_b32 s51, s49, 4")
            A("  s_add_u32 s50, s50, s51            ; tg*131072 + j*16")
            A(f"  v_lshlrev_b32 v{X+2}, 9, v3         ; lane*512")
            for m in range(1,4): A(f"  s_add_u32 s{56+m}, s50, {32768*m}")
        else:
            A("  s_lshl_b32 s51, s49, 12")
            A("  s_add_u32 s50, s50, s51            ; tg*131072 + j*4096")
            A(f"  v_lshlrev_b32 v{X+2}, 4, v3")
        for _ in range(rdelay): A("  s_sleep 32")
        A("  s_mov_b32 s42, 0")
        A("L_rpoll:")
        for m in range(4):
            if h1N: A(f"  buffer_load_dwordx4 v[{T+4*m}:{T+4*m+3}], v{X+2}, s[28:31], s{50 if m==0 else 56+m} offen {rpf}")
            else: A(f"  buffer_load_dwordx4 v[{T+4*m}:{T+4*m+3}], v{X+2}, s[28:31], s50 offen offset:{1024*m} {rpf}")
        A("  s_waitcnt vmcnt(0)")
        for m in range(8): A(f"  v_xor_b32 v{T+2*m+1}, s56, v{T+2*m+1}")
        A(f"  v_or3_b32 v{X+3}, v{T+1}, v{T+3}, v{T+5}")
        A(f"  v_or3_b32 v{X+3}, v{X+3}, v{T+7}, v{T+9}")
        A(f"  v_or3_b32 v{X+3}, v{X+3}, v{T+11}, v{T+13}")
        A(f"  v_or_b32 v{X+3}, v{X+3}, v{T+15}")
        A(f"  v_cmp_ne_u32 vcc, 0, v{X+3}")
        A("  s_cbranch_vccz L_rok")
        if rmask:
            A("  s_mov_b64 exec, vcc")
        if rsleep: A(f"  s_sleep {rsleep}")
        A("  s_add_u32 s42, s42, 1")
        A(f"  s_cmp_lt_u32 s42, {SPIN}")
        A("  s_cbranch_scc1 L_rpoll")
        A("L_rok:")
        if rmask: A("  s_mov_b64 exec, -1")
        stamp(8)
        if ts: A("  s_mov_b32 s82, s42")
        A(f"  v_add_f32 v{T}, v{T}, v{T+4}")
        A(f"  v_add_f32 v{T+2}, v{T+2}, v{T+6}")
        A(f"  v_add_f32 v{T+8}, v{T+8}, v{T+12}")
        A(f"  v_add_f32 v{T+10}, v{T+10}, v{T+14}")
        A(f"  v_add_f32 v{T}, v{T}, v{T+8}")
        A(f"  v_add_f32 v{T+2}, v{T+2}, v{T+10}")
        A("  s_nop 1")
        A(f"  v_permlane32_swap_b32 v{T}, v{T+2}")
        A(f"  v_add_f32 v{T}, v{T}, v{T+2}")
        A(f"  v_mov_b32 v{T+1}, v{T}")
        A("  s_nop 1")
        A(f"  v_permlane16_swap_b32 v{T}, v{T+1}")
        A(f"  v_add_f32 v{T}, v{T}, v{T+1}")
        for rr in (8, 4, 2, 1):
            A("  s_nop 1")
            A(f"  v_add_f32_dpp v{T}, v{T}, v{T} row_ror:{rr} row_mask:0xf bank_mask:0xf")
        A(f"  v_lshlrev_b32 v{X+1}, 16, v{X+1}    ; w as f32")
        A("  s_mov_b32 s52, 0x36800000           ; 2^-18")
        A("  s_mov_b32 s53, 0xbfb8aa3b           ; -log2(e)")
        def rnd(reg):
            A(f"  v_cvt_pk_bf16_f32 v{reg}, v{reg}, v{reg}")
            A(f"  v_and_b32 v{reg}, s36, v{reg}")
        rnd(T)
        A(f"  v_mul_f32 v{T}, s52, v{T}")
        rnd(T)
        A(f"  v_mul_f32 v{T}, v{X+1}, v{T}")
        rnd(T)
        A(f"  v_add_f32 v{T}, 0, v{T}")
        A(f"  v_mul_f32 v{T}, s53, v{T}")
        A(f"  v_exp_f32 v{T}, v{T}")
        A("  s_nop 0")
        A(f"  v_add_f32 v{T}, 1.0, v{T}")
        A(f"  v_rcp_f32 v{T}, v{T}")
        A("  s_nop 0")
        rnd(T)
        A(f"  v_lshrrev_b32 v{T+1}, 5, v3")
        A(f"  s_lshl_b32 s50, s45, 3")
        A(f"  v_lshl_add_u32 v{T+1}, v{T+1}, 2, s50     ; q*8 + v*4")
        A(f"  v_mov_b32 v{T+2}, 1")
        A("  s_mov_b32 exec_lo, 1")
        A("  s_mov_b32 exec_hi, 1")
        A(f"  ds_write_b32 v{T+1}, v{T} offset:{L_RED}")
        A("  s_waitcnt lgkmcnt(0)")
        A("  s_mov_b64 exec, 1")
        A(f"  ds_add_rtn_u32 v{T+3}, v7, v{T+2} offset:{L_CTL+48}")
        A("  s_waitcnt lgkmcnt(0)")
        A("  s_mov_b64 exec, -1")
        A(f"  v_readfirstlane_b32 s41, v{T+3}")
        A("  s_cmp_eq_u32 s41, 3")
        A("  s_cbranch_scc0 L_nored")
        A(f"  v_and_b32 v{T+2}, 7, v3")
        A(f"  v_lshlrev_b32 v{T+2}, 2, v{T+2}")
        A("  s_mov_b64 exec, 0xffff")
        A(f"  ds_read_b32 v{T}, v{T+2} offset:{L_RED}")
        A(f"  v_lshlrev_b32 v{T+2}, 3, v3")
        A(f"  v_mov_b32 v{T+1}, s56")
        A("  s_lshl_b32 s50, s2, 7")
        A(f"  s_add_u32 s50, s50, {H2}")
        A("  s_waitcnt lgkmcnt(0)")
        A(f"  buffer_store_dwordx2 v[{T}:{T+1}], v{T+2}, s[28:31], s50 offen sc1")
        stamp(9)
        if ts:
            A("  s_waitcnt vmcnt(0)")
            stamp(10)
        A("  s_mov_b64 exec, -1")
    A("L_nored:")
    if nopoll:
        for i in (4,5,6): stamp(i)
        A("  s_branch L_fin")
    A("  s_cmp_eq_u32 s45, 3")
    A("  s_cbranch_scc0 L_nopoll")
    if semi:
        A("  s_cmp_eq_u32 s44, 2")
        A("  s_cbranch_scc1 L_semi_p")
        lds_spin(f"v7 offset:{L_CTL+24}", 4, "semp")
        A("L_semi_p:")
    A(f"  v_lshrrev_b32 v{X+2}, 3, v3")
    A(f"  v_lshlrev_b32 v{X+2}, 7, v{X+2}")
    A(f"  v_and_b32 v{X+3}, 7, v3")
    A(f"  v_lshl_add_u32 v{X+2}, v{X+3}, 3, v{X+2}   ; (l>>3)*128 + (l&7)*8")
    A("  s_lshl_b32 s50, s44, 10")
    A(f"  s_add_u32 s50, s50, {H2}")
    for _ in range(wdelay): A("  s_sleep 32")
    A("  s_mov_b32 s42, 0")
    A("L_wpoll:")
    A(f"  buffer_load_dwordx2 v[{T}:{T+1}], v{X+2}, s[28:31], s50 offen {wpf}")
    A("  s_waitcnt vmcnt(0)")
    A(f"  v_cmp_ne_u32 vcc, s56, v{T+1}")
    A("  s_cbranch_vccz L_wok")
    if sleep_poll: A(f"  s_sleep {sleep_poll}")
    A("  s_add_u32 s42, s42, 1")
    A(f"  s_cmp_lt_u32 s42, {SPIN}")
    A("  s_cbranch_scc1 L_wpoll")
    A("L_wok:")
    A(f"  v_lshl_add_u32 v{T+1}, v5, 3, v4")
    A(f"  v_lshlrev_b32 v{T+1}, 2, v{T+1}")
    A("  s_lshl_b32 s50, s44, 8")
    A(f"  v_add_u32 v{T+1}, s50, v{T+1}")
    A(f"  ds_write_b32 v{T+1}, v{T} offset:{L_S}")
    A(f"  v_mov_b32 v{T+2}, 1")
    A("  s_waitcnt lgkmcnt(0)")
    A("  s_mov_b64 exec, 1")
    A(f"  ds_write_b32 v{X}, v{T+2} offset:{L_CTL+12}")
    A("  s_mov_b64 exec, -1")
    A("  s_cmp_eq_u32 s2, 0")
    A("  s_cbranch_scc0 L_nopoll")
    A("  s_cmp_eq_u32 s44, 2")
    A("  s_cbranch_scc0 L_nopoll")
    lds_spin(f"v7 offset:{L_CTL+12}", 1, "e0")
    lds_spin(f"v7 offset:{L_CTL+16}", 1, "e1")
    A(f"  v_mov_b32 v{T+2}, s56")
    A(f"  s_mov_b32 s50, {EOFF}")
    A("  s_mov_b64 exec, 1")
    A(f"  buffer_store_dword v{T+2}, off, s[28:31], s50 sc1")
    A("  s_mov_b64 exec, -1")
    A("L_nopoll:")
    lds_spin(f"v{X} offset:{L_CTL+12}", 1, "sf")
    stamp(4)
    A("  s_lshl_b32 s50, s44, 8")
    A(f"  v_lshl_add_u32 v{T}, v5, 5, s50     ; g*256 + (l&7)*32")
    A(f"  ds_read_b128 v[{ACC}:{ACC+3}], v{T} offset:{L_S}")
    A(f"  ds_read_b128 v[{ACC+4}:{ACC+7}], v{T} offset:{L_S+16}")
    if chain:
        if schain:
            A("  s_add_u32 s47, s44, 3")
            lds_spin(f"v{X+7} offset:{L_CTL+32}", "s47", "sch")
        else:
            A("  s_cmp_eq_u32 s44, 2")
            A("  s_cbranch_scc1 L_nogate")
            lds_spin(f"v{X+7} offset:{L_CTL+32}", 3, "sch")
            A("L_nogate:")
        if prio: A("  s_setprio 0")
    elif sgate is not None:
        A("  s_cmp_eq_u32 s44, 2")
        A("  s_cbranch_scc1 L_nogate")
        lds_spin(f"v7 offset:{L_CTL+24}", 4, "is")
        lds_spin(f"v7 offset:{L_CTL+12+4*sgate}", 1, "sg")
        if prio: A("  s_setprio 0")
        A("L_nogate:")
    elif late or semi:
        if evengate is not None:
            A("  s_getreg_b32 s84, hwreg(HW_REG_XCC_ID)")
            A("  s_and_b32 s84, s84, 1")
            A("  s_cmp_eq_u32 s84, 0")
            A("  s_cbranch_scc0 L_noeven")
            A(f"  s_cmp_lt_u32 s44, {evengate}")
            A("  s_cbranch_scc0 L_noeven")
            lds_spin(f"v7 offset:{L_CTL+12+4*evengate}", 1, "eg")
            A("L_noeven:")
        if prio: A("  s_setprio 0")
    elif not early_store:
        A("  s_cmp_eq_u32 s44, 2")
        A("  s_cbranch_scc1 L_nogate")
        lds_spin(f"v7 offset:{L_CTL+24}", 4, "is")
        if prio: A("  s_setprio 0")
        A("L_nogate:")
    A("  s_mov_b32 s38, s37")
    A("  s_waitcnt lgkmcnt(0)")
    stamp(5)
    if stop == 3:
        if chain and schain:
            A(f"  v_mov_b32 v{T}, 1")
            A("  s_mov_b64 exec, 1")
            A(f"  ds_add_u32 v{X+7}, v{T} offset:{L_CTL+32}")
            A("  s_mov_b64 exec, -1")
        stamp(6)
        A("  s_branch L_fin")
    if evenswin:
        A("  s_getreg_b32 s84, hwreg(HW_REG_XCC_ID)")
        A("  s_and_b32 s84, s84, 1")
        A("  s_xor_b32 s84, s84, 1")
        if evenmin:
            A(f"  s_cmp_ge_u32 s44, {evenmin}")
            A("  s_cselect_b32 s84, s84, 0")
        A("  s_mov_b32 s85, 0")
        A("  s_mov_b64 vcc, s[84:85]")
    if dry is not None: A("L_storecode:")
    for k in range(NQ):
        r = DATA + 4 * k
        for d in range(4):
            t0 = T + 2 * d
            A(f"  v_lshlrev_b32 v{t0}, 16, v{r+d}")
            A(f"  v_and_b32 v{t0+1}, s36, v{r+d}")
            if pk:
                A(f"  v_pk_mul_f32 v[{t0}:{t0+1}], v[{t0}:{t0+1}], v[{ACC+2*d}:{ACC+2*d+1}]")
            else:
                A(f"  v_mul_f32 v{t0}, v{t0}, v{ACC+2*d}")
                A(f"  v_mul_f32 v{t0+1}, v{t0+1}, v{ACC+2*d+1}")
        for d in range(4):
            t0 = T + 2 * d
            A(f"  v_cvt_pk_bf16_f32 v{r+d}, v{t0}, v{t0+1}")
        if swin and k >= swin and k < swinn: A(f"  s_waitcnt vmcnt({swin-1})")
        if evenswin and k >= max(evenswin, evenk0):
            A(f"  s_cbranch_vccz L_ew{k}")
            A(f"  s_waitcnt vmcnt({evenswin-1})")
            A(f"L_ew{k}:")
        if dry is not None: A(f"  s_cbranch_execz L_sk{k}")
        if stride < 4096:
            off = (k & 1) * stride
            A(f"  buffer_store_dwordx4 v[{r}:{r+3}], v1, s[20:23], s38 offen offset:{off} {stf}".rstrip())
            if dry is not None: A(f"L_sk{k}:")
            if (k & 1) and k != NQ - 1: A("  s_add_u32 s38, s38, s46")
        else:
            A(f"  buffer_store_dwordx4 v[{r}:{r+3}], v1, s[20:23], s38 offen {stf}".rstrip())
            if dry is not None: A(f"L_sk{k}:")
            if k != NQ - 1: A("  s_add_u32 s38, s38, s46")
    if dry is not None:
        A("  s_cmp_eq_u32 s83, 1")
        A("  s_cbranch_scc1 L_dryback")
    if chain and schain:
        A(f"  v_mov_b32 v{T}, 1")
        A("  s_mov_b64 exec, 1")
        A(f"  ds_add_u32 v{X+7}, v{T} offset:{L_CTL+32}")
        A("  s_mov_b64 exec, -1")
    stamp(6)
    A("L_fin:")
    if ts and meas:
        a, b, M = meas
        A("  s_waitcnt vmcnt(0)")
        stamp(7)
        A("  s_waitcnt lgkmcnt(0)")
        A("  s_mul_i32 s15, s2, 12"); A("  s_add_u32 s15, s15, s14")
        A(f"  s_cmp_eq_u32 s15, {meas_wave[0]}")
        A("  s_cbranch_scc0 L_end")
        A(f"  s_sub_u32 s46, s{60+2*b}, s{60+2*a}")
        A(f"  s_mul_i32 s46, s46, {M}")
        A("  s_min_u32 s46, s46, 200000")
        A("L_spin:")
        A("  s_memrealtime s[48:49]")
        A("  s_waitcnt lgkmcnt(0)")
        A("  s_sub_u32 s47, s48, s74")
        A("  s_cmp_lt_u32 s47, s46")
        A("  s_cbranch_scc1 L_spin")
    elif ts:
        A("  s_waitcnt vmcnt(0)")
        stamp(7)
        A("  s_getreg_b32 s50, hwreg(HW_REG_XCC_ID)")
        A("  s_and_b32 s50, s50, 0xf")
        A("  s_waitcnt lgkmcnt(0)")
        A("  s_mov_b64 exec, 1")
        A("  s_mul_i32 s15, s2, 12"); A("  s_add_u32 s15, s15, s14")
        A(f"  s_mul_i32 s43, s15, 48")
        A(f"  s_add_u32 s43, s43, {TSOFF}")
        for i in range(8):
            A(f"  v_mov_b32 v{T+i}, s{60+2*i}")
            A(f"  buffer_store_dword v{T+i}, off, s[28:31], s43 offset:{4*i}")
        A(f"  v_mov_b32 v{T+8}, s50")
        A(f"  buffer_store_dword v{T+8}, off, s[28:31], s43 offset:32")
        for i in (8,9,10):
            A(f"  v_mov_b32 v{T+i+1}, s{60+2*i}")
            A(f"  buffer_store_dword v{T+i+1}, off, s[28:31], s43 offset:{4*(i+1)}")
    A("L_end:")
    A("  s_endpgm")
    A('.section .rodata,"a"'); A(".p2align 6"); A(f".amdhsa_kernel {NAME}")
    A("  .amdhsa_next_free_vgpr 168"); A("  .amdhsa_next_free_sgpr 96"); A("  .amdhsa_accum_offset 168")
    A("  .amdhsa_group_segment_fixed_size 0"); A("  .amdhsa_kernarg_size 40"); A("  .amdhsa_user_sgpr_count 2")
    A("  .amdhsa_user_sgpr_kernarg_segment_ptr 1"); A("  .amdhsa_system_sgpr_workgroup_id_x 1"); A("  .amdhsa_float_denorm_mode_32 3")
    A(".end_amdhsa_kernel")
    return "\n".join(L) + "\n"
meas_wave = [0]
if __name__ == "__main__":
    ap = argparse.ArgumentParser()
    ap.add_argument("-o", default="-"); ap.add_argument("--layout", default="A"); ap.add_argument("--ldf", default="nt"); ap.add_argument("--stf", default="sc1")
    ap.add_argument("--ts", action="store_true"); ap.add_argument("--swin", type=int, default=0); ap.add_argument("--noprio", action="store_true")
    ap.add_argument("--meas", default=None); ap.add_argument("--mw", type=int, default=0); ap.add_argument("--sp", type=int, default=4); ap.add_argument("--sl", type=int, default=1)
    ap.add_argument("--early", action="store_true"); ap.add_argument("--gate", default="issue"); ap.add_argument("--pk", action="store_true"); ap.add_argument("--lwin", type=int, default=0); ap.add_argument("--chain", action="store_true"); ap.add_argument("--noschain", action="store_true"); ap.add_argument("--rsleep", type=int, default=8); ap.add_argument("--clrw", type=int, default=8); ap.add_argument("--stop", type=int, default=0); ap.add_argument("--noclr", action="store_true"); ap.add_argument("--clrmode", default="sc"); ap.add_argument("--sigmode", default="atomic"); ap.add_argument("--rpf", default="sc1"); ap.add_argument("--wpf", default="sc1"); ap.add_argument("--pubf", default="sc1"); ap.add_argument("--rdelay", type=int, default=0); ap.add_argument("--wdelay", type=int, default=0); ap.add_argument("--h1T", action="store_true"); ap.add_argument("--warm", default=None); ap.add_argument("--rmask", action="store_true"); ap.add_argument("--rwait", action="store_true"); ap.add_argument("--late", action="store_true"); ap.add_argument("--nored", action="store_true"); ap.add_argument("--nopoll", action="store_true"); ap.add_argument("--half", action="store_true"); ap.add_argument("--sgate", type=int, default=None); ap.add_argument("--semi", action="store_true"); ap.add_argument("--sigk", type=int, default=32); ap.add_argument("--dry", type=int, default=None); ap.add_argument("--prostamp", action="store_true"); ap.add_argument("--swinn", type=int, default=32); ap.add_argument("--fastpro", action="store_true"); ap.add_argument("--evengate", type=int, default=None); ap.add_argument("--evenswin", type=int, default=0); ap.add_argument("--evenmin", type=int, default=0); ap.add_argument("--evenk0", type=int, default=0)
    a = ap.parse_args()
    meas_wave[0] = a.mw
    s = gen(layout=a.layout, ldf=a.ldf, stf=a.stf, ts=a.ts, swin=a.swin, prio=not a.noprio, meas=tuple(int(x) for x in a.meas.split(",")) if a.meas else None,
            sleep_poll=a.sp, sleep_lds=a.sl, early_store=a.early, gate=a.gate, pk=a.pk, lwin=a.lwin, chain=a.chain, schain=not a.noschain, rsleep=a.rsleep, clrw=(99 if a.noclr else a.clrw), stop=a.stop, clrmode=a.clrmode, sigmode=a.sigmode, rpf=a.rpf, wpf=a.wpf, pubf=a.pubf, rdelay=a.rdelay, wdelay=a.wdelay, h1N=not a.h1T, warm=a.warm, rmask=a.rmask, rwait=a.rwait, late=a.late, nored=a.nored, nopoll=a.nopoll, half=a.half, sgate=a.sgate, semi=a.semi, sigk=a.sigk, dry=a.dry, prostamp=a.prostamp, swinn=a.swinn, fastpro=a.fastpro, evengate=a.evengate, evenswin=a.evenswin, evenmin=a.evenmin, evenk0=a.evenk0)
    if a.o == "-": sys.stdout.write(s)
    else: open(a.o, "w").write(s)
```

```python
import sys, argparse
from gen import HEADER, NAME, XBYTES
NWG = 256

def gen(layout="A", ldf="nt", stf="sc1", ts=False, swin=0, prio=True, meas=None, sleep_poll=4, sleep_lds=1, early_store=False, gate="issue", pk=False, lwin=0, chain=False, schain=True, clrw=8, rsleep=8, csleep=8, stop=0, clrmode="sc", sigmode="atomic", rpf="sc1", wpf="sc1", pubf="sc1", rdelay=0, wdelay=0, h1N=True, warm=None, rmask=False, rwait=False, late=False, nored=False, nopoll=False, onepoll=False, half=False, sgate=None, semi=False, sigk=32, dry=None, prostamp=False, swinn=32, fastpro=False, evengate=None, evenswin=0, evenmin=0, evenk0=0, runlen=0, lw1=0, lw2=0):
    L = []; A = L.append
    NW = 12; NQ = 32
    ACC = 8; T = 16; DATA = 32; X = 160
    H1 = 0; H2 = 3 * 131072; EOFF = H2 + 4096; TSOFF = 512 * 1024 + 65536
    L_SLOT = 0
    L_S = 3072
    L_RED = 3072 + 768
    L_CTL = 3072 + 768 + 128
    lds = L_CTL + 64
    SPIN = "0x20000"
    A(HEADER.rstrip("\n"))
    A(f"; @launch grid=({NWG},1,1) block=({NW*64},1,1) lds={lds}")
    A('.amdgcn_target "amdgcn-amd-amdhsa--gfx950"'); A(".text"); A(f".globl {NAME}"); A(".p2align 8"); A(f".type {NAME},@function"); A(f"{NAME}:")
    def stamp(i):
        if ts: A(f"  s_memrealtime s[{60+2*i}:{61+2*i}]")
    uid = [0]
    def lab(s):
        uid[0] += 1
        return f"L_{s}_{uid[0]}"
    def lds_spin(off, target, name):
        l0, l1 = lab(name), lab(name + "ok")
        A("  s_mov_b32 s42, 0")
        A(f"{l0}:")
        A(f"  ds_read_b32 v{X+6}, {off}")
        A("  s_waitcnt lgkmcnt(0)")
        A(f"  v_readfirstlane_b32 s41, v{X+6}")
        A(f"  s_cmp_ge_u32 s41, {target}")
        A(f"  s_cbranch_scc1 {l1}")
        if sleep_lds: A(f"  s_sleep {sleep_lds}")
        A("  s_add_u32 s42, s42, 1")
        A(f"  s_cmp_lt_u32 s42, 0x400000")
        A(f"  s_cbranch_scc1 {l0}")
        A(f"{l1}:")
    def cnt_check(name):
        l0, l1 = lab(name), lab(name + "ok")
        A("  s_mov_b32 s42, 0")
        A(f"{l0}:")
        A(f"  buffer_load_dword v{X+6}, off, s[24:27], 0 sc1")
        A("  s_waitcnt vmcnt(0)")
        A(f"  v_readfirstlane_b32 s41, v{X+6}")
        A(f"  s_cmp_ge_u32 s41, {NWG}")
        A(f"  s_cbranch_scc1 {l1}")
        if csleep: A(f"  s_sleep {csleep}")
        A("  s_add_u32 s42, s42, 1")
        A(f"  s_cmp_lt_u32 s42, {SPIN}")
        A(f"  s_cbranch_scc1 {l0}")
        A(f"{l1}:")
    A(f"  s_cmp_ge_u32 s2, {NWG}")
    A("  s_cbranch_scc1 L_end")
    stamp(0)
    if ts:
        for i in (8,9,10): A(f"  s_mov_b32 s{60+2*i}, 0")
    if fastpro:
        A("  s_load_dwordx2 s[16:17], s[0:1], 0     ; x")
        A("  s_load_dwordx2 s[20:21], s[0:1], 16    ; out")
        A("  s_load_dwordx2 s[28:29], s[0:1], 32    ; ws")
        A("  s_load_dwordx2 s[32:33], s[0:1], 8     ; w")
        A("  v_lshrrev_b32 v2, 6, v0")
        A("  v_and_b32 v3, 63, v0")
        A("  v_lshrrev_b32 v4, 3, v3            ; lane>>3")
        A("  v_readfirstlane_b32 s14, v2        ; w")
        A("  v_and_b32 v5, 7, v3                ; lane&7")
        A("  v_mul_u32_u24 v6, 0x180, v4")
        A("  v_lshl_add_u32 v1, v5, 4, v6")
        A("  v_mov_b32 v7, 0")
        A("  s_lshr_b32 s44, s14, 2             ; g")
        A("  s_and_b32 s45, s14, 3              ; q")
        A(f"  s_mov_b32 s18, {XBYTES}"); A("  s_mov_b32 s19, 0x20000")
        if layout == "A":
            A("  s_mul_i32 s37, s2, 393216"); A("  s_mul_i32 s38, s45, 98304"); stride = 3072
        elif layout == "C":
            A("  s_mul_i32 s37, s2, 393216"); A("  s_mul_i32 s38, s45, 3072"); stride = 4 * 3072
        elif layout == "B":
            A("  s_mul_i32 s37, s2, 12288"); A("  s_mul_i32 s38, s45, 3072"); stride = 1024 * 3072
        elif layout == "R":
            A(f"  s_mul_i32 s37, s2, {12288*runlen}"); A(f"  s_mul_i32 s38, s45, {3072*runlen}"); stride = 1024 * 3072 * runlen
        A("  s_add_u32 s37, s37, s38")
        A("  s_lshl_b32 s38, s44, 7")
        A("  s_add_u32 s37, s37, s38")
        A("  s_cmp_eq_u32 s14, 0")
        A("  s_cbranch_scc0 L_noinit")
        A("  v_lshlrev_b32 v6, 2, v3")
        A("  s_mov_b64 exec, 0xffff")
        A(f"  ds_write_b32 v6, v7 offset:{L_CTL}")
        A("  s_mov_b64 exec, -1")
        A("  s_waitcnt lgkmcnt(0)")
        A("L_noinit:")
        A("  s_barrier")
        if prio:
            A("  s_cmp_eq_u32 s44, 0"); A("  s_cbranch_scc0 L_p1"); A("  s_setprio 2"); A("  s_branch L_p2")
            A("L_p1:"); A("  s_cmp_eq_u32 s44, 1"); A("  s_cbranch_scc0 L_p2"); A("  s_setprio 1"); A("L_p2:")
        A("  s_mov_b32 s36, 0xffff0000")
        A("  s_waitcnt lgkmcnt(0)")
        if prostamp: stamp(9)
    else:
        A("  s_load_dwordx4 s[4:7], s[0:1], 0")
        A("  s_load_dwordx4 s[8:11], s[0:1], 16")
        A("  s_load_dwordx2 s[12:13], s[0:1], 32")
        A("  v_lshrrev_b32 v2, 6, v0")
        A("  v_and_b32 v3, 63, v0")
        A("  v_lshrrev_b32 v4, 3, v3            ; lane>>3")
        A("  v_readfirstlane_b32 s14, v2        ; w")
        A("  v_and_b32 v5, 7, v3                ; lane&7")
        A("  v_mul_u32_u24 v6, 0x180, v4")
        A("  v_lshl_add_u32 v1, v5, 4, v6")
        A("  v_mov_b32 v7, 0")
        A("  s_mov_b32 s36, 0xffff0000")
        A("  s_lshr_b32 s44, s14, 2             ; g")
        A("  s_and_b32 s45, s14, 3              ; q")
        A("  s_cmp_eq_u32 s14, 0")
        A("  s_cbranch_scc0 L_noinit")
        A("  v_lshlrev_b32 v6, 2, v3")
        A("  s_mov_b64 exec, 0xffff")
        A(f"  ds_write_b32 v6, v7 offset:{L_CTL}")
        A("  s_mov_b64 exec, -1")
        A("L_noinit:")
        if layout == "A":
            A("  s_mul_i32 s37, s2, 393216")
            A("  s_mul_i32 s38, s45, 98304")
            stride = 3072
        elif layout == "C":
            A("  s_mul_i32 s37, s2, 393216")
            A("  s_mul_i32 s38, s45, 3072")
            stride = 4 * 3072
        elif layout == "B":
            A("  s_mul_i32 s37, s2, 12288")
            A("  s_mul_i32 s38, s45, 3072")
            stride = 1024 * 3072
        A("  s_add_u32 s37, s37, s38")
        A("  s_lshl_b32 s38, s44, 7")
        A("  s_add_u32 s37, s37, s38")
        if prio:
            A("  s_cmp_eq_u32 s44, 0"); A("  s_cbranch_scc0 L_p1"); A("  s_setprio 2"); A("  s_branch L_p2")
            A("L_p1:"); A("  s_cmp_eq_u32 s44, 1"); A("  s_cbranch_scc0 L_p2"); A("  s_setprio 1"); A("L_p2:")
        A("  s_waitcnt lgkmcnt(0)")
        if prostamp: stamp(9)
        A("  s_barrier")
        for base, src, n in ((16, 4, XBYTES), (20, 8, XBYTES), (24, 10, 256), (28, 12, 0x100000), (32, 6, 2)):
            A(f"  s_mov_b32 s{base}, s{src}"); A(f"  s_mov_b32 s{base+1}, s{src+1}"); A(f"  s_mov_b32 s{base+2}, {n}"); A(f"  s_mov_b32 s{base+3}, 0x20000")
    def deferred():
        if fastpro:
            A(f"  s_mov_b32 s22, {XBYTES}"); A("  s_mov_b32 s23, 0x20000")
            A("  s_mov_b32 s30, 0x100000"); A("  s_mov_b32 s31, 0x20000")
            A("  s_mov_b32 s34, 2"); A("  s_mov_b32 s35, 0x20000")
            A("  s_mov_b32 s12, s28"); A("  s_mov_b32 s13, s29")
        A(f"  s_add_u32 s54, s12, {EOFF}")
        A("  s_addc_u32 s55, s13, 0")
        A("  s_load_dword s56, s[54:55], 0")
        if h1N:
            A("  v_lshlrev_b32 v2, 3, v3            ; lane*8")
            A("  s_lshl_b32 s39, s2, 9              ; wg*512")
        else:
            A("  v_lshrrev_b32 v2, 1, v3")
            A("  v_lshlrev_b32 v2, 12, v2")
            A("  v_and_b32 v6, 1, v3")
            A("  v_lshl_add_u32 v2, v6, 3, v2")
            A("  s_lshl_b32 s39, s2, 4              ; wg*16")
    if not fastpro: deferred()
    if warm is not None:
        A("  s_cmp_eq_u32 s14, 8")
        A("  s_cbranch_scc0 L_nowarm")
        if prio: A("  s_setprio 3")
        A(f"  v_lshlrev_b32 v{T}, 4, v3")
        A("  s_mul_i32 s40, s2, 1536")
        A(f"  buffer_load_dwordx4 v[{T+4}:{T+7}], v{T}, s[28:31], s40 offen {warm}".rstrip())
        A("  s_mov_b32 exec_hi, 0")
        A(f"  buffer_load_dwordx4 v[{T+8}:{T+11}], v{T}, s[28:31], s40 offen offset:1024 {warm}".rstrip())
        A("  s_mov_b64 exec, -1")
        if prio: A("  s_setprio 0")
        A("L_nowarm:")
    A(f"  s_lshl_b32 s47, s45, 2")
    A(f"  v_mov_b32 v{X+7}, s47")
    if chain:
        A("  s_cmp_eq_u32 s44, 0")
        A("  s_cbranch_scc1 L_nochain")
        lds_spin(f"v{X+7} offset:{L_CTL+32}", "s44", "ch")
        A("L_nochain:")
    if prostamp: stamp(10)
    A("  s_mov_b32 s38, s37")
    A(f"  s_mov_b32 s46, {stride*2 if stride*2 < (1<<31) and stride < 4096 else stride}")
    def accum(k):
        r = DATA + 4 * k
        for d in range(4):
            a0 = ACC + 2 * d
            if k == 0:
                A(f"  v_lshlrev_b32 v{a0}, 16, v{r+d}")
                A(f"  v_and_b32 v{a0+1}, s36, v{r+d}")
            else:
                t0 = T + 2 * d
                A(f"  v_lshlrev_b32 v{t0}, 16, v{r+d}")
                A(f"  v_and_b32 v{t0+1}, s36, v{r+d}")
                A(f"  v_add_f32 v{a0}, v{a0}, v{t0}")
                A(f"  v_add_f32 v{a0+1}, v{a0+1}, v{t0+1}")
    for k in range(NQ):
        r = DATA + 4 * k
        if lwin and k >= lwin: A(f"  s_waitcnt vmcnt({lwin-1})")
        if lw1 and k >= lw1 and lw1 < lwin:
            A("  s_cmp_ge_u32 s44, 1"); A(f"  s_cbranch_scc0 L_lw1_{k}"); A(f"  s_waitcnt vmcnt({lw1-1})"); A(f"L_lw1_{k}:")
        if lw2 and k >= lw2 and lw2 < (lw1 if lw1 else lwin):
            A("  s_cmp_eq_u32 s44, 2"); A(f"  s_cbranch_scc0 L_lw2_{k}"); A(f"  s_waitcnt vmcnt({lw2-1})"); A(f"L_lw2_{k}:")
        if layout == "R":
            A(f"  buffer_load_dwordx4 v[{r}:{r+3}], v1, s[16:19], s38 offen offset:{(k & 1) * 3072 if runlen > 1 else 0} {ldf}".rstrip())
            if k != NQ - 1:
                if runlen == 1: A(f"  s_add_u32 s38, s38, {stride}")
                elif k & 1:
                    step = 6144 if ((k + 1) % runlen) else stride - (runlen - 2) * 3072
                    A(f"  s_add_u32 s38, s38, {step}")
        elif stride < 4096:
            off = (k & 1) * stride
            A(f"  buffer_load_dwordx4 v[{r}:{r+3}], v1, s[16:19], s38 offen offset:{off} {ldf}".rstrip())
            if (k & 1) and k != NQ - 1: A("  s_add_u32 s38, s38, s46")
        else:
            A(f"  buffer_load_dwordx4 v[{r}:{r+3}], v1, s[16:19], s38 offen {ldf}".rstrip())
            if k != NQ - 1: A("  s_add_u32 s38, s38, s46")
        if lwin and k >= lwin: accum(k - lwin)
        if gate == "issue" and sigk < NQ and k == sigk - 1:
            A("  s_cmp_eq_u32 s44, 2")
            A("  s_cbranch_scc0 L_nosigk")
            A(f"  v_mov_b32 v{X+5}, 1")
            A("  s_mov_b64 exec, 1")
            A(f"  ds_add_u32 v7, v{X+5} offset:{L_CTL+24}")
            A("  s_mov_b64 exec, -1")
            A("L_nosigk:")
    stamp(1)
    if fastpro: deferred()
    else:
        A("  s_waitcnt lgkmcnt(0)")
        A("  s_add_u32 s56, s56, 0x9e3779b9     ; tag")
    if chain:
        A(f"  v_mov_b32 v{T}, 1")
        A("  s_mov_b64 exec, 1")
        A(f"  ds_add_u32 v{X+7}, v{T} offset:{L_CTL+32}")
        A("  s_mov_b64 exec, -1")
    A("  s_cmp_eq_u32 s44, 2")
    A("  s_cbranch_scc0 L_notg2")
    if gate == "issue" and sigk >= NQ:
        A(f"  v_mov_b32 v{T}, 1")
        A("  s_mov_b64 exec, 1")
        A(f"  ds_add_u32 v7, v{T} offset:{L_CTL+24}")
        A("  s_mov_b64 exec, -1")
    if prio: A("  s_setprio 3")
    A("L_notg2:")
    for k in range((NQ - lwin) if lwin else 0, NQ):
        A(f"  s_waitcnt vmcnt({NQ - 1 - k})")
        accum(k)
    stamp(2)
    if fastpro:
        A("  s_waitcnt lgkmcnt(0)")
        A("  s_add_u32 s56, s56, 0x9e3779b9     ; tag")
    if stop == 1:
        for i in (3,4,5,6): stamp(i)
        A("  s_branch L_fin")
    if gate == "land":
        A("  s_cmp_eq_u32 s44, 2")
        A("  s_cbranch_scc0 L_notg2b")
        A(f"  v_mov_b32 v{T}, 1")
        A("  s_mov_b64 exec, 1")
        A(f"  ds_add_u32 v7, v{T} offset:{L_CTL+24}")
        A("  s_mov_b64 exec, -1")
        A("L_notg2b:")
    A("  s_nop 1")
    for e in range(4): A(f"  v_permlane32_swap_b32 v{ACC+e}, v{ACC+e+4}")
    for e in range(4): A(f"  v_add_f32 v{ACC+e}, v{ACC+e}, v{ACC+e+4}")
    A("  s_nop 1")
    for e in range(2): A(f"  v_permlane16_swap_b32 v{ACC+e}, v{ACC+e+2}")
    for e in range(2): A(f"  v_add_f32 v{ACC+e}, v{ACC+e}, v{ACC+e+2}")
    A("  s_nop 1")
    A(f"  v_add_f32_dpp v{T}, v{ACC}, v{ACC} row_ror:8 row_mask:0xf bank_mask:0x3")
    A(f"  v_add_f32_dpp v{T}, v{ACC+1}, v{ACC+1} row_ror:8 row_mask:0xf bank_mask:0xc")
    A(f"  v_lshlrev_b32 v{T+1}, 2, v0")
    A(f"  ds_write_b32 v{T+1}, v{T} offset:{L_SLOT}")
    A(f"  s_lshl_b32 s47, s44, 2             ; g*4")
    A(f"  v_mov_b32 v{X}, s47")
    def emit_dry():
        A(f"  s_cmp_eq_u32 s14, {dry}")
        A("  s_cbranch_scc0 L_nodry")
        A("  s_mov_b32 s83, 1")
        A("  s_mov_b64 exec, 0")
        A("  s_branch L_storecode")
        A("L_dryback:")
        A("  s_mov_b64 exec, -1")
        A("L_nodry:")
        A("  s_mov_b32 s83, 0")
    if dry is not None and late: emit_dry()
    if late:
        A("  s_cmp_eq_u32 s44, 2")
        A("  s_cbranch_scc1 L_nolate")
        lds_spin(f"v7 offset:{L_CTL+24}", 4, "late")
        A("L_nolate:")
    A(f"  v_mov_b32 v{T+2}, 1")
    A("  s_waitcnt lgkmcnt(0)")
    A("  s_mov_b64 exec, 1")
    A(f"  ds_add_rtn_u32 v{T+3}, v{X}, v{T+2} offset:{L_CTL}")
    A("  s_waitcnt lgkmcnt(0)")
    A("  s_mov_b64 exec, -1")
    A(f"  v_readfirstlane_b32 s41, v{T+3}")
    A("  s_cmp_eq_u32 s41, 3")
    A("  s_cbranch_scc0 L_nopub")
    A(f"  s_lshl_b32 s47, s44, 10            ; g*1024")
    A(f"  v_lshl_add_u32 v{T+1}, v3, 2, s47")
    for q in range(4): A(f"  ds_read_b32 v{T+4+q}, v{T+1} offset:{L_SLOT + 256*q}")
    A("  s_waitcnt lgkmcnt(0)")
    A(f"  v_add_f32 v{T+4}, v{T+4}, v{T+5}")
    A(f"  v_add_f32 v{T+6}, v{T+6}, v{T+7}")
    A(f"  s_lshl_b32 s40, s44, 17            ; g*131072")
    A(f"  s_add_u32 s40, s40, s39")
    A(f"  v_add_f32 v{T+4}, v{T+4}, v{T+6}")
    A(f"  v_mov_b32 v{T+5}, s56")
    A(f"  buffer_store_dwordx2 v[{T+4}:{T+5}], v2, s[28:31], s40 offen {pubf}")
    A("L_nopub:")
    stamp(3)
    if stop == 2:
        for i in (4,5,6): stamp(i)
        A("  s_branch L_fin")
    if dry is not None and not late: emit_dry()
    if nored: A("  s_branch L_nored")
    A("  s_cmp_lt_u32 s2, 24")
    A("  s_cbranch_scc0 L_nored")
    A("  s_lshr_b32 s48, s2, 3              ; tg")
    if late or semi: A("  s_mov_b32 s49, s48")
    else: A("  s_and_b32 s49, s48, 2")
    A("  s_cmp_eq_u32 s44, s49")
    A("  s_cbranch_scc0 L_nored")
    A(f"  buffer_load_ushort v{X+1}, off, s[32:35], 0")
    if semi:
        A("  s_cmp_eq_u32 s44, 2")
        A("  s_cbranch_scc1 L_semi_r")
        lds_spin(f"v7 offset:{L_CTL+24}", 4, "semr")
        A("L_semi_r:")
    if rwait:
        A("  s_lshl_b32 s49, s48, 2")
        A(f"  v_mov_b32 v{X+4}, s49")
        lds_spin(f"v{X+4} offset:{L_CTL}", 4, "rw")
    if half:
        A("  s_and_b32 s49, s2, 7               ; i")
        A("  s_lshl_b32 s50, s48, 17")
        A("  s_lshl_b32 s51, s49, 6")
        A("  s_add_u32 s50, s50, s51")
        A("  s_lshl_b32 s51, s45, 15")
        A("  s_add_u32 s50, s50, s51            ; tg*131072 + i*64 + q*32768")
        for m in range(1,4): A(f"  s_add_u32 s{56+m}, s50, {8192*m}")
        A(f"  v_lshrrev_b32 v{X+2}, 2, v3")
        A(f"  v_lshlrev_b32 v{X+2}, 9, v{X+2}")
        A(f"  v_and_b32 v{X+3}, 3, v3")
        A(f"  v_lshl_add_u32 v{X+2}, v{X+3}, 4, v{X+2}   ; (l>>2)*512 + (l&3)*16")
        for _ in range(rdelay): A("  s_sleep 32")
        A("  s_mov_b32 s42, 0")
        A("L_rpoll:")
        for m in range(4):
            A(f"  buffer_load_dwordx4 v[{T+4*m}:{T+4*m+3}], v{X+2}, s[28:31], s{50 if m==0 else 56+m} offen {rpf}")
        A("  s_waitcnt vmcnt(0)")
        for m in range(8): A(f"  v_xor_b32 v{T+2*m+1}, s56, v{T+2*m+1}")
        A(f"  v_or3_b32 v{X+3}, v{T+1}, v{T+3}, v{T+5}")
        A(f"  v_or3_b32 v{X+3}, v{X+3}, v{T+7}, v{T+9}")
        A(f"  v_or3_b32 v{X+3}, v{X+3}, v{T+11}, v{T+13}")
        A(f"  v_or_b32 v{X+3}, v{X+3}, v{T+15}")
        A(f"  v_cmp_ne_u32 vcc, 0, v{X+3}")
        A("  s_cbranch_vccz L_rok")
        if rmask: A("  s_mov_b64 exec, vcc")
        if rsleep: A(f"  s_sleep {rsleep}")
        A("  s_add_u32 s42, s42, 1")
        A(f"  s_cmp_lt_u32 s42, {SPIN}")
        A("  s_cbranch_scc1 L_rpoll")
        A("L_rok:")
        if rmask: A("  s_mov_b64 exec, -1")
        stamp(8)
        A(f"  v_add_f32 v{T}, v{T}, v{T+4}")
        A(f"  v_add_f32 v{T+2}, v{T+2}, v{T+6}")
        A(f"  v_add_f32 v{T+8}, v{T+8}, v{T+12}")
        A(f"  v_add_f32 v{T+10}, v{T+10}, v{T+14}")
        A(f"  v_add_f32 v{T}, v{T}, v{T+8}")
        A(f"  v_add_f32 v{T+2}, v{T+2}, v{T+10}")
        for rr in (8, 4):
            A("  s_nop 1")
            A(f"  v_add_f32_dpp v{T}, v{T}, v{T} row_ror:{rr} row_mask:0xf bank_mask:0xf")
            A(f"  v_add_f32_dpp v{T+2}, v{T+2}, v{T+2} row_ror:{rr} row_mask:0xf bank_mask:0xf")
        A("  s_nop 1")
        A(f"  v_permlane32_swap_b32 v{T}, v{T+2}")
        A(f"  v_add_f32 v{T}, v{T}, v{T+2}")
        A(f"  v_mov_b32 v{T+1}, v{T}")
        A("  s_nop 1")
        A(f"  v_permlane16_swap_b32 v{T}, v{T+1}")
        A(f"  v_add_f32 v{T}, v{T}, v{T+1}")
        A(f"  v_and_b32 v{T+1}, 3, v3")
        A(f"  v_lshlrev_b32 v{T+1}, 3, v{T+1}")
        A(f"  v_lshrrev_b32 v{T+2}, 5, v3")
        A(f"  v_lshl_add_u32 v{T+1}, v{T+2}, 2, v{T+1}")
        A(f"  s_lshl_b32 s50, s45, 5")
        A(f"  v_add_u32 v{T+1}, s50, v{T+1}")
        A(f"  v_mov_b32 v{T+2}, 1")
        A("  s_mov_b32 exec_lo, 0xf")
        A("  s_mov_b32 exec_hi, 0xf")
        A(f"  ds_write_b32 v{T+1}, v{T} offset:{L_RED}")
        A("  s_waitcnt lgkmcnt(0)")
        A("  s_mov_b64 exec, 1")
        A(f"  ds_add_rtn_u32 v{T+3}, v7, v{T+2} offset:{L_CTL+48}")
        A("  s_waitcnt lgkmcnt(0)")
        A("  s_mov_b64 exec, -1")
        A(f"  v_readfirstlane_b32 s41, v{T+3}")
        A("  s_cmp_eq_u32 s41, 3")
        A("  s_cbranch_scc0 L_nored")
        A(f"  v_and_b32 v{T+2}, 7, v3")
        A(f"  v_lshlrev_b32 v{T+2}, 2, v{T+2}")
        for q in range(4): A(f"  ds_read_b32 v{T+4+q}, v{T+2} offset:{L_RED + 32*q}")
        A(f"  v_lshlrev_b32 v{X+1}, 16, v{X+1}    ; w as f32")
        A("  s_mov_b32 s52, 0x36800000           ; 2^-18")
        A("  s_mov_b32 s53, 0xbfb8aa3b           ; -log2(e)")
        A("  s_lshl_b32 s50, s2, 7")
        A(f"  s_add_u32 s50, s50, {H2}")
        A("  s_waitcnt lgkmcnt(0)")
        A(f"  v_add_f32 v{T+4}, v{T+4}, v{T+5}")
        A(f"  v_add_f32 v{T+6}, v{T+6}, v{T+7}")
        A(f"  v_add_f32 v{T}, v{T+4}, v{T+6}")
        def rnd(reg):
            A(f"  v_cvt_pk_bf16_f32 v{reg}, v{reg}, v{reg}")
            A(f"  v_and_b32 v{reg}, s36, v{reg}")
        rnd(T)
        A(f"  v_mul_f32 v{T}, s52, v{T}")
        rnd(T)
        A(f"  v_mul_f32 v{T}, v{X+1}, v{T}")
        rnd(T)
        A(f"  v_add_f32 v{T}, 0, v{T}")
        A(f"  v_mul_f32 v{T}, s53, v{T}")
        A(f"  v_exp_f32 v{T}, v{T}")
        A(f"  v_lshlrev_b32 v{T+2}, 3, v3")
        A(f"  v_add_f32 v{T}, 1.0, v{T}")
        A(f"  v_rcp_f32 v{T}, v{T}")
        A(f"  v_mov_b32 v{T+1}, s56")
        rnd(T)
        A(f"  v_mov_b32 v{T+1}, s56")
        A("  s_mov_b64 exec, 0xffff")
        A(f"  buffer_store_dwordx2 v[{T}:{T+1}], v{T+2}, s[28:31], s50 offen sc1")
        stamp(9)
        if ts:
            A("  s_waitcnt vmcnt(0)")
            stamp(10)
        A("  s_mov_b64 exec, -1")
    else:
        A("  s_and_b32 s49, s2, 7               ; i")
        A("  s_lshl_b32 s49, s49, 2")
        A("  s_add_u32 s49, s49, s45            ; j = 4i+q")
        A("  s_lshl_b32 s50, s48, 17")
        if h1N:
            A("  s_lshl_b32 s51, s49, 4")
            A("  s_add_u32 s50, s50, s51            ; tg*131072 + j*16")
            A(f"  v_lshlrev_b32 v{X+2}, 9, v3         ; lane*512")
            for m in range(1,4): A(f"  s_add_u32 s{56+m}, s50, {32768*m}")
        else:
            A("  s_lshl_b32 s51, s49, 12")
            A("  s_add_u32 s50, s50, s51            ; tg*131072 + j*4096")
            A(f"  v_lshlrev_b32 v{X+2}, 4, v3")
        for _ in range(rdelay): A("  s_sleep 32")
        A("  s_mov_b32 s42, 0")
        A("L_rpoll:")
        for m in range(4):
            if h1N: A(f"  buffer_load_dwordx4 v[{T+4*m}:{T+4*m+3}], v{X+2}, s[28:31], s{50 if m==0 else 56+m} offen {rpf}")
            else: A(f"  buffer_load_dwordx4 v[{T+4*m}:{T+4*m+3}], v{X+2}, s[28:31], s50 offen offset:{1024*m} {rpf}")
        A("  s_waitcnt vmcnt(0)")
        for m in range(8): A(f"  v_xor_b32 v{T+2*m+1}, s56, v{T+2*m+1}")
        A(f"  v_or3_b32 v{X+3}, v{T+1}, v{T+3}, v{T+5}")
        A(f"  v_or3_b32 v{X+3}, v{X+3}, v{T+7}, v{T+9}")
        A(f"  v_or3_b32 v{X+3}, v{X+3}, v{T+11}, v{T+13}")
        A(f"  v_or_b32 v{X+3}, v{X+3}, v{T+15}")
        A(f"  v_cmp_ne_u32 vcc, 0, v{X+3}")
        A("  s_cbranch_vccz L_rok")
        if rmask:
            A("  s_mov_b64 exec, vcc")
        if rsleep: A(f"  s_sleep {rsleep}")
        A("  s_add_u32 s42, s42, 1")
        A(f"  s_cmp_lt_u32 s42, {SPIN}")
        A("  s_cbranch_scc1 L_rpoll")
        A("L_rok:")
        if rmask: A("  s_mov_b64 exec, -1")
        stamp(8)
        if ts: A("  s_mov_b32 s82, s42")
        A(f"  v_add_f32 v{T}, v{T}, v{T+4}")
        A(f"  v_add_f32 v{T+2}, v{T+2}, v{T+6}")
        A(f"  v_add_f32 v{T+8}, v{T+8}, v{T+12}")
        A(f"  v_add_f32 v{T+10}, v{T+10}, v{T+14}")
        A(f"  v_add_f32 v{T}, v{T}, v{T+8}")
        A(f"  v_add_f32 v{T+2}, v{T+2}, v{T+10}")
        A("  s_nop 1")
        A(f"  v_permlane32_swap_b32 v{T}, v{T+2}")
        A(f"  v_add_f32 v{T}, v{T}, v{T+2}")
        A(f"  v_mov_b32 v{T+1}, v{T}")
        A("  s_nop 1")
        A(f"  v_permlane16_swap_b32 v{T}, v{T+1}")
        A(f"  v_add_f32 v{T}, v{T}, v{T+1}")
        for rr in (8, 4, 2, 1):
            A("  s_nop 1")
            A(f"  v_add_f32_dpp v{T}, v{T}, v{T} row_ror:{rr} row_mask:0xf bank_mask:0xf")
        A(f"  v_lshlrev_b32 v{X+1}, 16, v{X+1}    ; w as f32")
        A("  s_mov_b32 s52, 0x36800000           ; 2^-18")
        A("  s_mov_b32 s53, 0xbfb8aa3b           ; -log2(e)")
        def rnd(reg):
            A(f"  v_cvt_pk_bf16_f32 v{reg}, v{reg}, v{reg}")
            A(f"  v_and_b32 v{reg}, s36, v{reg}")
        rnd(T)
        A(f"  v_mul_f32 v{T}, s52, v{T}")
        rnd(T)
        A(f"  v_mul_f32 v{T}, v{X+1}, v{T}")
        rnd(T)
        A(f"  v_add_f32 v{T}, 0, v{T}")
        A(f"  v_mul_f32 v{T}, s53, v{T}")
        A(f"  v_exp_f32 v{T}, v{T}")
        A("  s_nop 0")
        A(f"  v_add_f32 v{T}, 1.0, v{T}")
        A(f"  v_rcp_f32 v{T}, v{T}")
        A("  s_nop 0")
        rnd(T)
        A(f"  v_lshrrev_b32 v{T+1}, 5, v3")
        A(f"  s_lshl_b32 s50, s45, 3")
        A(f"  v_lshl_add_u32 v{T+1}, v{T+1}, 2, s50     ; q*8 + v*4")
        A(f"  v_mov_b32 v{T+2}, 1")
        A("  s_mov_b32 exec_lo, 1")
        A("  s_mov_b32 exec_hi, 1")
        A(f"  ds_write_b32 v{T+1}, v{T} offset:{L_RED}")
        A("  s_waitcnt lgkmcnt(0)")
        A("  s_mov_b64 exec, 1")
        A(f"  ds_add_rtn_u32 v{T+3}, v7, v{T+2} offset:{L_CTL+48}")
        A("  s_waitcnt lgkmcnt(0)")
        A("  s_mov_b64 exec, -1")
        A(f"  v_readfirstlane_b32 s41, v{T+3}")
        A("  s_cmp_eq_u32 s41, 3")
        A("  s_cbranch_scc0 L_nored")
        A(f"  v_and_b32 v{T+2}, 7, v3")
        A(f"  v_lshlrev_b32 v{T+2}, 2, v{T+2}")
        A("  s_mov_b64 exec, 0xffff")
        A(f"  ds_read_b32 v{T}, v{T+2} offset:{L_RED}")
        A(f"  v_lshlrev_b32 v{T+2}, 3, v3")
        A(f"  v_mov_b32 v{T+1}, s56")
        A("  s_lshl_b32 s50, s2, 7")
        A(f"  s_add_u32 s50, s50, {H2}")
        A("  s_waitcnt lgkmcnt(0)")
        A(f"  buffer_store_dwordx2 v[{T}:{T+1}], v{T+2}, s[28:31], s50 offen sc1")
        stamp(9)
        if ts:
            A("  s_waitcnt vmcnt(0)")
            stamp(10)
        A("  s_mov_b64 exec, -1")
    A("L_nored:")
    if nopoll:
        for i in (4,5,6): stamp(i)
        A("  s_branch L_fin")
    A("  s_cmp_eq_u32 s45, 3")
    A("  s_cbranch_scc0 L_nopoll")
    if semi:
        A("  s_cmp_eq_u32 s44, 2")
        A("  s_cbranch_scc1 L_semi_p")
        lds_spin(f"v7 offset:{L_CTL+24}", 4, "semp")
        A("L_semi_p:")
    A(f"  v_lshrrev_b32 v{X+2}, 3, v3")
    A(f"  v_lshlrev_b32 v{X+2}, 7, v{X+2}")
    A(f"  v_and_b32 v{X+3}, 7, v3")
    A(f"  v_lshl_add_u32 v{X+2}, v{X+3}, 3, v{X+2}   ; (l>>3)*128 + (l&7)*8")
    A("  s_lshl_b32 s50, s44, 10")
    A(f"  s_add_u32 s50, s50, {H2}")
    for _ in range(wdelay): A("  s_sleep 32")
    A("  s_mov_b32 s42, 0")
    A("L_wpoll:")
    A(f"  buffer_load_dwordx2 v[{T}:{T+1}], v{X+2}, s[28:31], s50 offen {wpf}")
    A("  s_waitcnt vmcnt(0)")
    A(f"  v_cmp_ne_u32 vcc, s56, v{T+1}")
    A("  s_cbranch_vccz L_wok")
    if sleep_poll: A(f"  s_sleep {sleep_poll}")
    A("  s_add_u32 s42, s42, 1")
    A(f"  s_cmp_lt_u32 s42, {SPIN}")
    A("  s_cbranch_scc1 L_wpoll")
    A("L_wok:")
    A(f"  v_lshl_add_u32 v{T+1}, v5, 3, v4")
    A(f"  v_lshlrev_b32 v{T+1}, 2, v{T+1}")
    A("  s_lshl_b32 s50, s44, 8")
    A(f"  v_add_u32 v{T+1}, s50, v{T+1}")
    A(f"  ds_write_b32 v{T+1}, v{T} offset:{L_S}")
    A(f"  v_mov_b32 v{T+2}, 1")
    A("  s_waitcnt lgkmcnt(0)")
    A("  s_mov_b64 exec, 1")
    A(f"  ds_write_b32 v{X}, v{T+2} offset:{L_CTL+12}")
    A("  s_mov_b64 exec, -1")
    A("  s_cmp_eq_u32 s2, 0")
    A("  s_cbranch_scc0 L_nopoll")
    A("  s_cmp_eq_u32 s44, 2")
    A("  s_cbranch_scc0 L_nopoll")
    lds_spin(f"v7 offset:{L_CTL+12}", 1, "e0")
    lds_spin(f"v7 offset:{L_CTL+16}", 1, "e1")
    A(f"  v_mov_b32 v{T+2}, s56")
    A(f"  s_mov_b32 s50, {EOFF}")
    A("  s_mov_b64 exec, 1")
    A(f"  buffer_store_dword v{T+2}, off, s[28:31], s50 sc1")
    A("  s_mov_b64 exec, -1")
    A("L_nopoll:")
    lds_spin(f"v{X} offset:{L_CTL+12}", 1, "sf")
    stamp(4)
    A("  s_lshl_b32 s50, s44, 8")
    A(f"  v_lshl_add_u32 v{T}, v5, 5, s50     ; g*256 + (l&7)*32")
    A(f"  ds_read_b128 v[{ACC}:{ACC+3}], v{T} offset:{L_S}")
    A(f"  ds_read_b128 v[{ACC+4}:{ACC+7}], v{T} offset:{L_S+16}")
    if chain:
        if schain:
            A("  s_add_u32 s47, s44, 3")
            lds_spin(f"v{X+7} offset:{L_CTL+32}", "s47", "sch")
        else:
            A("  s_cmp_eq_u32 s44, 2")
            A("  s_cbranch_scc1 L_nogate")
            lds_spin(f"v{X+7} offset:{L_CTL+32}", 3, "sch")
            A("L_nogate:")
        if prio: A("  s_setprio 0")
    elif sgate is not None:
        A("  s_cmp_eq_u32 s44, 2")
        A("  s_cbranch_scc1 L_nogate")
        lds_spin(f"v7 offset:{L_CTL+24}", 4, "is")
        lds_spin(f"v7 offset:{L_CTL+12+4*sgate}", 1, "sg")
        if prio: A("  s_setprio 0")
        A("L_nogate:")
    elif late or semi:
        if evengate is not None:
            A("  s_getreg_b32 s84, hwreg(HW_REG_XCC_ID)")
            A("  s_and_b32 s84, s84, 1")
            A("  s_cmp_eq_u32 s84, 0")
            A("  s_cbranch_scc0 L_noeven")
            A(f"  s_cmp_lt_u32 s44, {evengate}")
            A("  s_cbranch_scc0 L_noeven")
            lds_spin(f"v7 offset:{L_CTL+12+4*evengate}", 1, "eg")
            A("L_noeven:")
        if prio: A("  s_setprio 0")
    elif not early_store:
        A("  s_cmp_eq_u32 s44, 2")
        A("  s_cbranch_scc1 L_nogate")
        lds_spin(f"v7 offset:{L_CTL+24}", 4, "is")
        if prio: A("  s_setprio 0")
        A("L_nogate:")
    A("  s_mov_b32 s38, s37")
    A("  s_waitcnt lgkmcnt(0)")
    stamp(5)
    if stop == 3:
        if chain and schain:
            A(f"  v_mov_b32 v{T}, 1")
            A("  s_mov_b64 exec, 1")
            A(f"  ds_add_u32 v{X+7}, v{T} offset:{L_CTL+32}")
            A("  s_mov_b64 exec, -1")
        stamp(6)
        A("  s_branch L_fin")
    if evenswin:
        A("  s_getreg_b32 s84, hwreg(HW_REG_XCC_ID)")
        A("  s_and_b32 s84, s84, 1")
        A("  s_xor_b32 s84, s84, 1")
        if evenmin:
            A(f"  s_cmp_ge_u32 s44, {evenmin}")
            A("  s_cselect_b32 s84, s84, 0")
        A("  s_mov_b32 s85, 0")
        A("  s_mov_b64 vcc, s[84:85]")
    if dry is not None: A("L_storecode:")
    for k in range(NQ):
        r = DATA + 4 * k
        for d in range(4):
            t0 = T + 2 * d
            A(f"  v_lshlrev_b32 v{t0}, 16, v{r+d}")
            A(f"  v_and_b32 v{t0+1}, s36, v{r+d}")
            if pk:
                A(f"  v_pk_mul_f32 v[{t0}:{t0+1}], v[{t0}:{t0+1}], v[{ACC+2*d}:{ACC+2*d+1}]")
            else:
                A(f"  v_mul_f32 v{t0}, v{t0}, v{ACC+2*d}")
                A(f"  v_mul_f32 v{t0+1}, v{t0+1}, v{ACC+2*d+1}")
        for d in range(4):
            t0 = T + 2 * d
            A(f"  v_cvt_pk_bf16_f32 v{r+d}, v{t0}, v{t0+1}")
        if swin and k >= swin and k < swinn: A(f"  s_waitcnt vmcnt({swin-1})")
        if evenswin and k >= max(evenswin, evenk0):
            A(f"  s_cbranch_vccz L_ew{k}")
            A(f"  s_waitcnt vmcnt({evenswin-1})")
            A(f"L_ew{k}:")
        if dry is not None: A(f"  s_cbranch_execz L_sk{k}")
        if layout == "R":
            A(f"  buffer_store_dwordx4 v[{r}:{r+3}], v1, s[20:23], s38 offen offset:{(k & 1) * 3072 if runlen > 1 else 0} {stf}".rstrip())
            if dry is not None: A(f"L_sk{k}:")
            if k != NQ - 1:
                if runlen == 1: A(f"  s_add_u32 s38, s38, {stride}")
                elif k & 1:
                    step = 6144 if ((k + 1) % runlen) else stride - (runlen - 2) * 3072
                    A(f"  s_add_u32 s38, s38, {step}")
        elif stride < 4096:
            off = (k & 1) * stride
            A(f"  buffer_store_dwordx4 v[{r}:{r+3}], v1, s[20:23], s38 offen offset:{off} {stf}".rstrip())
            if dry is not None: A(f"L_sk{k}:")
            if (k & 1) and k != NQ - 1: A("  s_add_u32 s38, s38, s46")
        else:
            A(f"  buffer_store_dwordx4 v[{r}:{r+3}], v1, s[20:23], s38 offen {stf}".rstrip())
            if dry is not None: A(f"L_sk{k}:")
            if k != NQ - 1: A("  s_add_u32 s38, s38, s46")
    if dry is not None:
        A("  s_cmp_eq_u32 s83, 1")
        A("  s_cbranch_scc1 L_dryback")
    if chain and schain:
        A(f"  v_mov_b32 v{T}, 1")
        A("  s_mov_b64 exec, 1")
        A(f"  ds_add_u32 v{X+7}, v{T} offset:{L_CTL+32}")
        A("  s_mov_b64 exec, -1")
    stamp(6)
    A("L_fin:")
    if ts and meas:
        a, b, M = meas
        A("  s_waitcnt vmcnt(0)")
        stamp(7)
        A("  s_waitcnt lgkmcnt(0)")
        A("  s_mul_i32 s15, s2, 12"); A("  s_add_u32 s15, s15, s14")
        A(f"  s_cmp_eq_u32 s15, {meas_wave[0]}")
        A("  s_cbranch_scc0 L_end")
        A(f"  s_sub_u32 s46, s{60+2*b}, s{60+2*a}")
        A(f"  s_mul_i32 s46, s46, {M}")
        A("  s_min_u32 s46, s46, 200000")
        A("L_spin:")
        A("  s_memrealtime s[48:49]")
        A("  s_waitcnt lgkmcnt(0)")
        A("  s_sub_u32 s47, s48, s74")
        A("  s_cmp_lt_u32 s47, s46")
        A("  s_cbranch_scc1 L_spin")
    elif ts:
        A("  s_waitcnt vmcnt(0)")
        stamp(7)
        A("  s_getreg_b32 s50, hwreg(HW_REG_XCC_ID)")
        A("  s_and_b32 s50, s50, 0xf")
        A("  s_waitcnt lgkmcnt(0)")
        A("  s_mov_b64 exec, 1")
        A("  s_mul_i32 s15, s2, 12"); A("  s_add_u32 s15, s15, s14")
        A(f"  s_mul_i32 s43, s15, 48")
        A(f"  s_add_u32 s43, s43, {TSOFF}")
        for i in range(8):
            A(f"  v_mov_b32 v{T+i}, s{60+2*i}")
            A(f"  buffer_store_dword v{T+i}, off, s[28:31], s43 offset:{4*i}")
        A(f"  v_mov_b32 v{T+8}, s50")
        A(f"  buffer_store_dword v{T+8}, off, s[28:31], s43 offset:32")
        for i in (8,9,10):
            A(f"  v_mov_b32 v{T+i+1}, s{60+2*i}")
            A(f"  buffer_store_dword v{T+i+1}, off, s[28:31], s43 offset:{4*(i+1)}")
    A("L_end:")
    A("  s_endpgm")
    A('.section .rodata,"a"'); A(".p2align 6"); A(f".amdhsa_kernel {NAME}")
    A("  .amdhsa_next_free_vgpr 168"); A("  .amdhsa_next_free_sgpr 96"); A("  .amdhsa_accum_offset 168")
    A("  .amdhsa_group_segment_fixed_size 0"); A("  .amdhsa_kernarg_size 40"); A("  .amdhsa_user_sgpr_count 2")
    A("  .amdhsa_user_sgpr_kernarg_segment_ptr 1"); A("  .amdhsa_system_sgpr_workgroup_id_x 1"); A("  .amdhsa_float_denorm_mode_32 3")
    A(".end_amdhsa_kernel")
    return "\n".join(L) + "\n"
meas_wave = [0]
if __name__ == "__main__":
    ap = argparse.ArgumentParser()
    ap.add_argument("-o", default="-"); ap.add_argument("--layout", default="A"); ap.add_argument("--ldf", default="nt"); ap.add_argument("--stf", default="sc1")
    ap.add_argument("--ts", action="store_true"); ap.add_argument("--swin", type=int, default=0); ap.add_argument("--noprio", action="store_true")
    ap.add_argument("--meas", default=None); ap.add_argument("--mw", type=int, default=0); ap.add_argument("--sp", type=int, default=4); ap.add_argument("--sl", type=int, default=1)
    ap.add_argument("--early", action="store_true"); ap.add_argument("--gate", default="issue"); ap.add_argument("--pk", action="store_true"); ap.add_argument("--lwin", type=int, default=0); ap.add_argument("--chain", action="store_true"); ap.add_argument("--noschain", action="store_true"); ap.add_argument("--rsleep", type=int, default=8); ap.add_argument("--clrw", type=int, default=8); ap.add_argument("--stop", type=int, default=0); ap.add_argument("--noclr", action="store_true"); ap.add_argument("--clrmode", default="sc"); ap.add_argument("--sigmode", default="atomic"); ap.add_argument("--rpf", default="sc1"); ap.add_argument("--wpf", default="sc1"); ap.add_argument("--pubf", default="sc1"); ap.add_argument("--rdelay", type=int, default=0); ap.add_argument("--wdelay", type=int, default=0); ap.add_argument("--h1T", action="store_true"); ap.add_argument("--warm", default=None); ap.add_argument("--rmask", action="store_true"); ap.add_argument("--rwait", action="store_true"); ap.add_argument("--late", action="store_true"); ap.add_argument("--nored", action="store_true"); ap.add_argument("--nopoll", action="store_true"); ap.add_argument("--half", action="store_true"); ap.add_argument("--sgate", type=int, default=None); ap.add_argument("--semi", action="store_true"); ap.add_argument("--sigk", type=int, default=32); ap.add_argument("--dry", type=int, default=None); ap.add_argument("--prostamp", action="store_true"); ap.add_argument("--swinn", type=int, default=32); ap.add_argument("--fastpro", action="store_true"); ap.add_argument("--evengate", type=int, default=None); ap.add_argument("--evenswin", type=int, default=0); ap.add_argument("--evenmin", type=int, default=0); ap.add_argument("--evenk0", type=int, default=0); ap.add_argument("--runlen", type=int, default=0); ap.add_argument("--lw1", type=int, default=0); ap.add_argument("--lw2", type=int, default=0)
    a = ap.parse_args()
    meas_wave[0] = a.mw
    s = gen(layout=a.layout, ldf=a.ldf, stf=a.stf, ts=a.ts, swin=a.swin, prio=not a.noprio, meas=tuple(int(x) for x in a.meas.split(",")) if a.meas else None,
            sleep_poll=a.sp, sleep_lds=a.sl, early_store=a.early, gate=a.gate, pk=a.pk, lwin=a.lwin, chain=a.chain, schain=not a.noschain, rsleep=a.rsleep, clrw=(99 if a.noclr else a.clrw), stop=a.stop, clrmode=a.clrmode, sigmode=a.sigmode, rpf=a.rpf, wpf=a.wpf, pubf=a.pubf, rdelay=a.rdelay, wdelay=a.wdelay, h1N=not a.h1T, warm=a.warm, rmask=a.rmask, rwait=a.rwait, late=a.late, nored=a.nored, nopoll=a.nopoll, half=a.half, sgate=a.sgate, semi=a.semi, sigk=a.sigk, dry=a.dry, prostamp=a.prostamp, swinn=a.swinn, fastpro=a.fastpro, evengate=a.evengate, evenswin=a.evenswin, evenmin=a.evenmin, evenk0=a.evenk0, runlen=a.runlen, lw1=a.lw1, lw2=a.lw2)
    if a.o == "-": sys.stdout.write(s)
    else: open(a.o, "w").write(s)
```

```python
import sys, argparse
from gen import HEADER, NAME, XBYTES
NWG = 256

DOC = """
ECA channel attention: out = x * sigmoid(w * mean_hw(x)), x = [262144 pixels][192 channels] bf16.
One persistent launch: 256 workgroups (one per CU, 12 waves x 168 VGPRs, all co-resident) keep the whole
96 MiB input in registers, so x is read once and out is written once.
 - A pixel is three 128-byte lines = three groups of 64 channels. Wave w handles group g = w>>2; it loads
   32 x (8 pixels x 128 bytes) into v32..v159 with at most 5 loads in flight (all 12 waves stream together,
   the older group-0 waves finish first) and sums them per channel in fp32.
 - Per group: the 4 waves combine through LDS and the last one publishes 64 {sum, tag} pairs (4 full lines).
   8 reducer workgroups per group gather one half line from all 256 workgroups, finish the sum, apply the
   reference rounding steps (bf16 sum, /HW, *w, sigmoid) and publish one line of {s, tag} pairs; one wave per
   workgroup and group polls these 8 lines and hands s to the other waves through LDS.
   The hand-offs of group 0/1 run under the remaining loads, that of group 2 under the stores of groups 0/1.
 - tag = (word left in d_ws) + constant; it only tells this launch's hand-offs from an earlier launch's.
   Workgroup 0 advances that word once every hand-off of the launch is known to be complete.
 - Scale and store (write-through). Dies with an even id keep at most 2-3 stores per wave in flight: two dies
   share one write link and the even one otherwise wins it (speed only).
All spins are bounded.
"""

def gen(layout="A", ldf="nt", stf="sc1", ts=False, swin=0, prio=True, meas=None, sleep_poll=4, sleep_lds=1, early_store=False, gate="issue", pk=False, lwin=0, chain=False, schain=True, clrw=8, rsleep=8, csleep=8, stop=0, clrmode="sc", sigmode="atomic", rpf="sc1", wpf="sc1", pubf="sc1", rdelay=0, wdelay=0, h1N=True, warm=None, rmask=False, rwait=False, late=False, nored=False, nopoll=False, onepoll=False, half=False, sgate=None, semi=False, sigk=32, dry=None, prostamp=False, swinn=32, fastpro=False, evengate=None, evenswin=0, evenmin=0, evenk0=0, runlen=0, lw1=0, lw2=0, boost2=False, sonly=False, evenb=0, evenks=32):
    L = []; A = L.append
    NW = 12; NQ = 32
    ACC = 8; T = 16; DATA = 32; X = 160
    H1 = 0; H2 = 3 * 131072; EOFF = H2 + 4096; TSOFF = 512 * 1024 + 65536
    L_SLOT = 0
    L_S = 3072
    L_RED = 3072 + 768
    L_CTL = 3072 + 768 + 128
    lds = L_CTL + 64
    SPIN = "0x20000"
    A(HEADER.rstrip("\n"))
    A(f"; @launch grid=({NWG},1,1) block=({NW*64},1,1) lds={lds}")
    if not ts:
        for l in DOC.strip("\n").split("\n"): A("; " + l if l else ";")
    A('.amdgcn_target "amdgcn-amd-amdhsa--gfx950"'); A(".text"); A(f".globl {NAME}"); A(".p2align 8"); A(f".type {NAME},@function"); A(f"{NAME}:")
    def stamp(i):
        if ts: A(f"  s_memrealtime s[{60+2*i}:{61+2*i}]")
    uid = [0]
    def lab(s):
        uid[0] += 1
        return f"L_{s}_{uid[0]}"
    def lds_spin(off, target, name):
        l0, l1 = lab(name), lab(name + "ok")
        A("  s_mov_b32 s42, 0")
        A(f"{l0}:")
        A(f"  ds_read_b32 v{X+6}, {off}")
        A("  s_waitcnt lgkmcnt(0)")
        A(f"  v_readfirstlane_b32 s41, v{X+6}")
        A(f"  s_cmp_ge_u32 s41, {target}")
        A(f"  s_cbranch_scc1 {l1}")
        if sleep_lds: A(f"  s_sleep {sleep_lds}")
        A("  s_add_u32 s42, s42, 1")
        A(f"  s_cmp_lt_u32 s42, 0x400000")
        A(f"  s_cbranch_scc1 {l0}")
        A(f"{l1}:")
    def cnt_check(name):
        l0, l1 = lab(name), lab(name + "ok")
        A("  s_mov_b32 s42, 0")
        A(f"{l0}:")
        A(f"  buffer_load_dword v{X+6}, off, s[24:27], 0 sc1")
        A("  s_waitcnt vmcnt(0)")
        A(f"  v_readfirstlane_b32 s41, v{X+6}")
        A(f"  s_cmp_ge_u32 s41, {NWG}")
        A(f"  s_cbranch_scc1 {l1}")
        if csleep: A(f"  s_sleep {csleep}")
        A("  s_add_u32 s42, s42, 1")
        A(f"  s_cmp_lt_u32 s42, {SPIN}")
        A(f"  s_cbranch_scc1 {l0}")
        A(f"{l1}:")
    A(f"  s_cmp_ge_u32 s2, {NWG}")
    A("  s_cbranch_scc1 L_end")
    stamp(0)
    if ts:
        for i in (8,9,10): A(f"  s_mov_b32 s{60+2*i}, 0")
    if fastpro:
        A("  s_load_dwordx2 s[16:17], s[0:1], 0     ; x")
        A("  s_load_dwordx2 s[20:21], s[0:1], 16    ; out")
        A("  s_load_dwordx2 s[28:29], s[0:1], 32    ; ws")
        A("  s_load_dwordx2 s[32:33], s[0:1], 8     ; w")
        A("  v_lshrrev_b32 v2, 6, v0")
        A("  v_and_b32 v3, 63, v0")
        A("  v_lshrrev_b32 v4, 3, v3            ; lane>>3")
        A("  v_readfirstlane_b32 s14, v2        ; w")
        A("  v_and_b32 v5, 7, v3                ; lane&7")
        A("  v_mul_u32_u24 v6, 0x180, v4")
        A("  v_lshl_add_u32 v1, v5, 4, v6")
        A("  v_mov_b32 v7, 0")
        A("  s_lshr_b32 s44, s14, 2             ; g")
        A("  s_and_b32 s45, s14, 3              ; q")
        A(f"  s_mov_b32 s18, {XBYTES}"); A("  s_mov_b32 s19, 0x20000")
        if layout == "A":
            A("  s_mul_i32 s37, s2, 393216"); A("  s_mul_i32 s38, s45, 98304"); stride = 3072
        elif layout == "C":
            A("  s_mul_i32 s37, s2, 393216"); A("  s_mul_i32 s38, s45, 3072"); stride = 4 * 3072
        elif layout == "B":
            A("  s_mul_i32 s37, s2, 12288"); A("  s_mul_i32 s38, s45, 3072"); stride = 1024 * 3072
        elif layout == "R":
            A(f"  s_mul_i32 s37, s2, {12288*runlen}"); A(f"  s_mul_i32 s38, s45, {3072*runlen}"); stride = 1024 * 3072 * runlen
        A("  s_add_u32 s37, s37, s38")
        A("  s_lshl_b32 s38, s44, 7")
        A("  s_add_u32 s37, s37, s38")
        A("  s_cmp_eq_u32 s14, 0")
        A("  s_cbranch_scc0 L_noinit")
        A("  v_lshlrev_b32 v6, 2, v3")
        A("  s_mov_b64 exec, 0xffff")
        A(f"  ds_write_b32 v6, v7 offset:{L_CTL}")
        A("  s_mov_b64 exec, -1")
        A("  s_waitcnt lgkmcnt(0)")
        A("L_noinit:")
        A("  s_barrier")
        if prio:
            A("  s_cmp_eq_u32 s44, 0"); A("  s_cbranch_scc0 L_p1"); A("  s_setprio 2"); A("  s_branch L_p2")
            A("L_p1:"); A("  s_cmp_eq_u32 s44, 1"); A("  s_cbranch_scc0 L_p2"); A("  s_setprio 1"); A("L_p2:")
        A("  s_mov_b32 s36, 0xffff0000")
        A("  s_waitcnt lgkmcnt(0)")
        if prostamp: stamp(9)
    else:
        A("  s_load_dwordx4 s[4:7], s[0:1], 0")
        A("  s_load_dwordx4 s[8:11], s[0:1], 16")
        A("  s_load_dwordx2 s[12:13], s[0:1], 32")
        A("  v_lshrrev_b32 v2, 6, v0")
        A("  v_and_b32 v3, 63, v0")
        A("  v_lshrrev_b32 v4, 3, v3            ; lane>>3")
        A("  v_readfirstlane_b32 s14, v2        ; w")
        A("  v_and_b32 v5, 7, v3                ; lane&7")
        A("  v_mul_u32_u24 v6, 0x180, v4")
        A("  v_lshl_add_u32 v1, v5, 4, v6")
        A("  v_mov_b32 v7, 0")
        A("  s_mov_b32 s36, 0xffff0000")
        A("  s_lshr_b32 s44, s14, 2             ; g")
        A("  s_and_b32 s45, s14, 3              ; q")
        A("  s_cmp_eq_u32 s14, 0")
        A("  s_cbranch_scc0 L_noinit")
        A("  v_lshlrev_b32 v6, 2, v3")
        A("  s_mov_b64 exec, 0xffff")
        A(f"  ds_write_b32 v6, v7 offset:{L_CTL}")
        A("  s_mov_b64 exec, -1")
        A("L_noinit:")
        if layout == "A":
            A("  s_mul_i32 s37, s2, 393216")
            A("  s_mul_i32 s38, s45, 98304")
            stride = 3072
        elif layout == "C":
            A("  s_mul_i32 s37, s2, 393216")
            A("  s_mul_i32 s38, s45, 3072")
            stride = 4 * 3072
        elif layout == "B":
            A("  s_mul_i32 s37, s2, 12288")
            A("  s_mul_i32 s38, s45, 3072")
            stride = 1024 * 3072
        A("  s_add_u32 s37, s37, s38")
        A("  s_lshl_b32 s38, s44, 7")
        A("  s_add_u32 s37, s37, s38")
        if prio:
            A("  s_cmp_eq_u32 s44, 0"); A("  s_cbranch_scc0 L_p1"); A("  s_setprio 2"); A("  s_branch L_p2")
            A("L_p1:"); A("  s_cmp_eq_u32 s44, 1"); A("  s_cbranch_scc0 L_p2"); A("  s_setprio 1"); A("L_p2:")
        A("  s_waitcnt lgkmcnt(0)")
        if prostamp: stamp(9)
        A("  s_barrier")
        for base, src, n in ((16, 4, XBYTES), (20, 8, XBYTES), (24, 10, 256), (28, 12, 0x100000), (32, 6, 2)):
            A(f"  s_mov_b32 s{base}, s{src}"); A(f"  s_mov_b32 s{base+1}, s{src+1}"); A(f"  s_mov_b32 s{base+2}, {n}"); A(f"  s_mov_b32 s{base+3}, 0x20000")
    def deferred():
        if fastpro:
            A(f"  s_mov_b32 s22, {XBYTES}"); A("  s_mov_b32 s23, 0x20000")
            A("  s_mov_b32 s30, 0x100000"); A("  s_mov_b32 s31, 0x20000")
            A("  s_mov_b32 s34, 2"); A("  s_mov_b32 s35, 0x20000")
            A("  s_mov_b32 s12, s28"); A("  s_mov_b32 s13, s29")
        A(f"  s_add_u32 s54, s12, {EOFF}")
        A("  s_addc_u32 s55, s13, 0")
        A("  s_load_dword s56, s[54:55], 0")
        if h1N:
            A("  v_lshlrev_b32 v2, 3, v3            ; lane*8")
            A("  s_lshl_b32 s39, s2, 9              ; wg*512")
        else:
            A("  v_lshrrev_b32 v2, 1, v3")
            A("  v_lshlrev_b32 v2, 12, v2")
            A("  v_and_b32 v6, 1, v3")
            A("  v_lshl_add_u32 v2, v6, 3, v2")
            A("  s_lshl_b32 s39, s2, 4              ; wg*16")
    if not fastpro: deferred()
    if warm is not None:
        A("  s_cmp_eq_u32 s14, 8")
        A("  s_cbranch_scc0 L_nowarm")
        if prio: A("  s_setprio 3")
        A(f"  v_lshlrev_b32 v{T}, 4, v3")
        A("  s_mul_i32 s40, s2, 1536")
        A(f"  buffer_load_dwordx4 v[{T+4}:{T+7}], v{T}, s[28:31], s40 offen {warm}".rstrip())
        A("  s_mov_b32 exec_hi, 0")
        A(f"  buffer_load_dwordx4 v[{T+8}:{T+11}], v{T}, s[28:31], s40 offen offset:1024 {warm}".rstrip())
        A("  s_mov_b64 exec, -1")
        if prio: A("  s_setprio 0")
        A("L_nowarm:")
    A(f"  s_lshl_b32 s47, s45, 2")
    A(f"  v_mov_b32 v{X+7}, s47")
    if chain:
        A("  s_cmp_eq_u32 s44, 0")
        A("  s_cbranch_scc1 L_nochain")
        lds_spin(f"v{X+7} offset:{L_CTL+32}", "s44", "ch")
        A("L_nochain:")
    if prostamp: stamp(10)
    A("  s_mov_b32 s38, s37")
    A(f"  s_mov_b32 s46, {stride*2 if stride*2 < (1<<31) and stride < 4096 else stride}")
    def accum(k):
        r = DATA + 4 * k
        for d in range(4):
            a0 = ACC + 2 * d
            if k == 0:
                A(f"  v_lshlrev_b32 v{a0}, 16, v{r+d}")
                A(f"  v_and_b32 v{a0+1}, s36, v{r+d}")
            else:
                t0 = T + 2 * d
                A(f"  v_lshlrev_b32 v{t0}, 16, v{r+d}")
                A(f"  v_and_b32 v{t0+1}, s36, v{r+d}")
                A(f"  v_add_f32 v{a0}, v{a0}, v{t0}")
                A(f"  v_add_f32 v{a0+1}, v{a0+1}, v{t0+1}")
    for k in range(NQ):
        r = DATA + 4 * k
        if lwin and k >= lwin: A(f"  s_waitcnt vmcnt({lwin-1})")
        if lw1 and k >= lw1 and lw1 < lwin:
            A("  s_cmp_ge_u32 s44, 1"); A(f"  s_cbranch_scc0 L_lw1_{k}"); A(f"  s_waitcnt vmcnt({lw1-1})"); A(f"L_lw1_{k}:")
        if lw2 and k >= lw2 and lw2 < (lw1 if lw1 else lwin):
            A("  s_cmp_eq_u32 s44, 2"); A(f"  s_cbranch_scc0 L_lw2_{k}"); A(f"  s_waitcnt vmcnt({lw2-1})"); A(f"L_lw2_{k}:")
        if layout == "R":
            A(f"  buffer_load_dwordx4 v[{r}:{r+3}], v1, s[16:19], s38 offen offset:{(k & 1) * 3072 if runlen > 1 else 0} {ldf}".rstrip())
            if k != NQ - 1:
                if runlen == 1: A(f"  s_add_u32 s38, s38, {stride}")
                elif k & 1:
                    step = 6144 if ((k + 1) % runlen) else stride - (runlen - 2) * 3072
                    A(f"  s_add_u32 s38, s38, {step}")
        elif stride < 4096:
            off = (k & 1) * stride
            A(f"  buffer_load_dwordx4 v[{r}:{r+3}], v1, s[16:19], s38 offen offset:{off} {ldf}".rstrip())
            if (k & 1) and k != NQ - 1: A("  s_add_u32 s38, s38, s46")
        else:
            A(f"  buffer_load_dwordx4 v[{r}:{r+3}], v1, s[16:19], s38 offen {ldf}".rstrip())
            if k != NQ - 1: A("  s_add_u32 s38, s38, s46")
        if lwin and k >= lwin: accum(k - lwin)
        if gate == "issue" and sigk < NQ and k == sigk - 1:
            A("  s_cmp_eq_u32 s44, 2")
            A("  s_cbranch_scc0 L_nosigk")
            A(f"  v_mov_b32 v{X+5}, 1")
            A("  s_mov_b64 exec, 1")
            A(f"  ds_add_u32 v7, v{X+5} offset:{L_CTL+24}")
            A("  s_mov_b64 exec, -1")
            A("L_nosigk:")
    stamp(1)
    if fastpro: deferred()
    else:
        A("  s_waitcnt lgkmcnt(0)")
        A("  s_add_u32 s56, s56, 0x9e3779b9     ; tag")
    if chain:
        A(f"  v_mov_b32 v{T}, 1")
        A("  s_mov_b64 exec, 1")
        A(f"  ds_add_u32 v{X+7}, v{T} offset:{L_CTL+32}")
        A("  s_mov_b64 exec, -1")
    A("  s_cmp_eq_u32 s44, 2")
    A("  s_cbranch_scc0 L_notg2")
    if gate == "issue" and sigk >= NQ:
        A(f"  v_mov_b32 v{T}, 1")
        A("  s_mov_b64 exec, 1")
        A(f"  ds_add_u32 v7, v{T} offset:{L_CTL+24}")
        A("  s_mov_b64 exec, -1")
    if prio or boost2: A("  s_setprio 3")
    A("L_notg2:")
    for k in range((NQ - lwin) if lwin else 0, NQ):
        A(f"  s_waitcnt vmcnt({NQ - 1 - k})")
        accum(k)
    stamp(2)
    if fastpro:
        A("  s_waitcnt lgkmcnt(0)")
        A("  s_add_u32 s56, s56, 0x9e3779b9     ; tag")
    if stop == 1:
        for i in (3,4,5,6): stamp(i)
        A("  s_branch L_fin")
    if gate == "land":
        A("  s_cmp_eq_u32 s44, 2")
        A("  s_cbranch_scc0 L_notg2b")
        A(f"  v_mov_b32 v{T}, 1")
        A("  s_mov_b64 exec, 1")
        A(f"  ds_add_u32 v7, v{T} offset:{L_CTL+24}")
        A("  s_mov_b64 exec, -1")
        A("L_notg2b:")
    A("  s_nop 1")
    for e in range(4): A(f"  v_permlane32_swap_b32 v{ACC+e}, v{ACC+e+4}")
    for e in range(4): A(f"  v_add_f32 v{ACC+e}, v{ACC+e}, v{ACC+e+4}")
    A("  s_nop 1")
    for e in range(2): A(f"  v_permlane16_swap_b32 v{ACC+e}, v{ACC+e+2}")
    for e in range(2): A(f"  v_add_f32 v{ACC+e}, v{ACC+e}, v{ACC+e+2}")
    A("  s_nop 1")
    A(f"  v_add_f32_dpp v{T}, v{ACC}, v{ACC} row_ror:8 row_mask:0xf bank_mask:0x3")
    A(f"  v_add_f32_dpp v{T}, v{ACC+1}, v{ACC+1} row_ror:8 row_mask:0xf bank_mask:0xc")
    A(f"  v_lshlrev_b32 v{T+1}, 2, v0")
    A(f"  ds_write_b32 v{T+1}, v{T} offset:{L_SLOT}")
    A(f"  s_lshl_b32 s47, s44, 2             ; g*4")
    A(f"  v_mov_b32 v{X}, s47")
    def emit_dry():
        A(f"  s_cmp_eq_u32 s14, {dry}")
        A("  s_cbranch_scc0 L_nodry")
        A("  s_mov_b32 s83, 1")
        A("  s_mov_b64 exec, 0")
        A("  s_branch L_storecode")
        A("L_dryback:")
        A("  s_mov_b64 exec, -1")
        A("L_nodry:")
        A("  s_mov_b32 s83, 0")
    if dry is not None and late: emit_dry()
    if late:
        A("  s_cmp_eq_u32 s44, 2")
        A("  s_cbranch_scc1 L_nolate")
        lds_spin(f"v7 offset:{L_CTL+24}", 4, "late")
        A("L_nolate:")
    A(f"  v_mov_b32 v{T+2}, 1")
    A("  s_waitcnt lgkmcnt(0)")
    A("  s_mov_b64 exec, 1")
    A(f"  ds_add_rtn_u32 v{T+3}, v{X}, v{T+2} offset:{L_CTL}")
    A("  s_waitcnt lgkmcnt(0)")
    A("  s_mov_b64 exec, -1")
    A(f"  v_readfirstlane_b32 s41, v{T+3}")
    A("  s_cmp_eq_u32 s41, 3")
    A("  s_cbranch_scc0 L_nopub")
    A(f"  s_lshl_b32 s47, s44, 10            ; g*1024")
    A(f"  v_lshl_add_u32 v{T+1}, v3, 2, s47")
    for q in range(4): A(f"  ds_read_b32 v{T+4+q}, v{T+1} offset:{L_SLOT + 256*q}")
    A("  s_waitcnt lgkmcnt(0)")
    A(f"  v_add_f32 v{T+4}, v{T+4}, v{T+5}")
    A(f"  v_add_f32 v{T+6}, v{T+6}, v{T+7}")
    A(f"  s_lshl_b32 s40, s44, 17            ; g*131072")
    A(f"  s_add_u32 s40, s40, s39")
    A(f"  v_add_f32 v{T+4}, v{T+4}, v{T+6}")
    A(f"  v_mov_b32 v{T+5}, s56")
    A(f"  buffer_store_dwordx2 v[{T+4}:{T+5}], v2, s[28:31], s40 offen {pubf}")
    A("L_nopub:")
    stamp(3)
    if stop == 2:
        for i in (4,5,6): stamp(i)
        A("  s_branch L_fin")
    if dry is not None and not late: emit_dry()
    if nored: A("  s_branch L_nored")
    A("  s_cmp_lt_u32 s2, 24")
    A("  s_cbranch_scc0 L_nored")
    A("  s_lshr_b32 s48, s2, 3              ; tg")
    if late or semi: A("  s_mov_b32 s49, s48")
    else: A("  s_and_b32 s49, s48, 2")
    A("  s_cmp_eq_u32 s44, s49")
    A("  s_cbranch_scc0 L_nored")
    A(f"  buffer_load_ushort v{X+1}, off, s[32:35], 0")
    if semi:
        A("  s_cmp_eq_u32 s44, 2")
        A("  s_cbranch_scc1 L_semi_r")
        lds_spin(f"v7 offset:{L_CTL+24}", 4, "semr")
        A("L_semi_r:")
    if rwait:
        A("  s_lshl_b32 s49, s48, 2")
        A(f"  v_mov_b32 v{X+4}, s49")
        lds_spin(f"v{X+4} offset:{L_CTL}", 4, "rw")
    if half:
        A("  s_and_b32 s49, s2, 7               ; i")
        A("  s_lshl_b32 s50, s48, 17")
        A("  s_lshl_b32 s51, s49, 6")
        A("  s_add_u32 s50, s50, s51")
        A("  s_lshl_b32 s51, s45, 15")
        A("  s_add_u32 s50, s50, s51            ; tg*131072 + i*64 + q*32768")
        for m in range(1,4): A(f"  s_add_u32 s{56+m}, s50, {8192*m}")
        A(f"  v_lshrrev_b32 v{X+2}, 2, v3")
        A(f"  v_lshlrev_b32 v{X+2}, 9, v{X+2}")
        A(f"  v_and_b32 v{X+3}, 3, v3")
        A(f"  v_lshl_add_u32 v{X+2}, v{X+3}, 4, v{X+2}   ; (l>>2)*512 + (l&3)*16")
        for _ in range(rdelay): A("  s_sleep 32")
        A("  s_mov_b32 s42, 0")
        A("L_rpoll:")
        for m in range(4):
            A(f"  buffer_load_dwordx4 v[{T+4*m}:{T+4*m+3}], v{X+2}, s[28:31], s{50 if m==0 else 56+m} offen {rpf}")
        A("  s_waitcnt vmcnt(0)")
        for m in range(8): A(f"  v_xor_b32 v{T+2*m+1}, s56, v{T+2*m+1}")
        A(f"  v_or3_b32 v{X+3}, v{T+1}, v{T+3}, v{T+5}")
        A(f"  v_or3_b32 v{X+3}, v{X+3}, v{T+7}, v{T+9}")
        A(f"  v_or3_b32 v{X+3}, v{X+3}, v{T+11}, v{T+13}")
        A(f"  v_or_b32 v{X+3}, v{X+3}, v{T+15}")
        A(f"  v_cmp_ne_u32 vcc, 0, v{X+3}")
        A("  s_cbranch_vccz L_rok")
        if rmask: A("  s_mov_b64 exec, vcc")
        if rsleep: A(f"  s_sleep {rsleep}")
        A("  s_add_u32 s42, s42, 1")
        A(f"  s_cmp_lt_u32 s42, {SPIN}")
        A("  s_cbranch_scc1 L_rpoll")
        A("L_rok:")
        if rmask: A("  s_mov_b64 exec, -1")
        stamp(8)
        A(f"  v_add_f32 v{T}, v{T}, v{T+4}")
        A(f"  v_add_f32 v{T+2}, v{T+2}, v{T+6}")
        A(f"  v_add_f32 v{T+8}, v{T+8}, v{T+12}")
        A(f"  v_add_f32 v{T+10}, v{T+10}, v{T+14}")
        A(f"  v_add_f32 v{T}, v{T}, v{T+8}")
        A(f"  v_add_f32 v{T+2}, v{T+2}, v{T+10}")
        for rr in (8, 4):
            A("  s_nop 1")
            A(f"  v_add_f32_dpp v{T}, v{T}, v{T} row_ror:{rr} row_mask:0xf bank_mask:0xf")
            A(f"  v_add_f32_dpp v{T+2}, v{T+2}, v{T+2} row_ror:{rr} row_mask:0xf bank_mask:0xf")
        A("  s_nop 1")
        A(f"  v_permlane32_swap_b32 v{T}, v{T+2}")
        A(f"  v_add_f32 v{T}, v{T}, v{T+2}")
        A(f"  v_mov_b32 v{T+1}, v{T}")
        A("  s_nop 1")
        A(f"  v_permlane16_swap_b32 v{T}, v{T+1}")
        A(f"  v_add_f32 v{T}, v{T}, v{T+1}")
        A(f"  v_and_b32 v{T+1}, 3, v3")
        A(f"  v_lshlrev_b32 v{T+1}, 3, v{T+1}")
        A(f"  v_lshrrev_b32 v{T+2}, 5, v3")
        A(f"  v_lshl_add_u32 v{T+1}, v{T+2}, 2, v{T+1}")
        A(f"  s_lshl_b32 s50, s45, 5")
        A(f"  v_add_u32 v{T+1}, s50, v{T+1}")
        A(f"  v_mov_b32 v{T+2}, 1")
        A("  s_mov_b32 exec_lo, 0xf")
        A("  s_mov_b32 exec_hi, 0xf")
        A(f"  ds_write_b32 v{T+1}, v{T} offset:{L_RED}")
        A("  s_waitcnt lgkmcnt(0)")
        A("  s_mov_b64 exec, 1")
        A(f"  ds_add_rtn_u32 v{T+3}, v7, v{T+2} offset:{L_CTL+48}")
        A("  s_waitcnt lgkmcnt(0)")
        A("  s_mov_b64 exec, -1")
        A(f"  v_readfirstlane_b32 s41, v{T+3}")
        A("  s_cmp_eq_u32 s41, 3")
        A("  s_cbranch_scc0 L_nored")
        A(f"  v_and_b32 v{T+2}, 7, v3")
        A(f"  v_lshlrev_b32 v{T+2}, 2, v{T+2}")
        for q in range(4): A(f"  ds_read_b32 v{T+4+q}, v{T+2} offset:{L_RED + 32*q}")
        A(f"  v_lshlrev_b32 v{X+1}, 16, v{X+1}    ; w as f32")
        A("  s_mov_b32 s52, 0x36800000           ; 2^-18")
        A("  s_mov_b32 s53, 0xbfb8aa3b           ; -log2(e)")
        A("  s_lshl_b32 s50, s2, 7")
        A(f"  s_add_u32 s50, s50, {H2}")
        A("  s_waitcnt lgkmcnt(0)")
        A(f"  v_add_f32 v{T+4}, v{T+4}, v{T+5}")
        A(f"  v_add_f32 v{T+6}, v{T+6}, v{T+7}")
        A(f"  v_add_f32 v{T}, v{T+4}, v{T+6}")
        def rnd(reg):
            A(f"  v_cvt_pk_bf16_f32 v{reg}, v{reg}, v{reg}")
            A(f"  v_and_b32 v{reg}, s36, v{reg}")
        rnd(T)
        A(f"  v_mul_f32 v{T}, s52, v{T}")
        rnd(T)
        A(f"  v_mul_f32 v{T}, v{X+1}, v{T}")
        rnd(T)
        A(f"  v_add_f32 v{T}, 0, v{T}")
        A(f"  v_mul_f32 v{T}, s53, v{T}")
        A(f"  v_exp_f32 v{T}, v{T}")
        A(f"  v_lshlrev_b32 v{T+2}, 3, v3")
        A(f"  v_add_f32 v{T}, 1.0, v{T}")
        A(f"  v_rcp_f32 v{T}, v{T}")
        A(f"  v_mov_b32 v{T+1}, s56")
        rnd(T)
        A(f"  v_mov_b32 v{T+1}, s56")
        A("  s_mov_b64 exec, 0xffff")
        A(f"  buffer_store_dwordx2 v[{T}:{T+1}], v{T+2}, s[28:31], s50 offen sc1")
        stamp(9)
        if ts:
            A("  s_waitcnt vmcnt(0)")
            stamp(10)
        A("  s_mov_b64 exec, -1")
    else:
        A("  s_and_b32 s49, s2, 7               ; i")
        A("  s_lshl_b32 s49, s49, 2")
        A("  s_add_u32 s49, s49, s45            ; j = 4i+q")
        A("  s_lshl_b32 s50, s48, 17")
        if h1N:
            A("  s_lshl_b32 s51, s49, 4")
            A("  s_add_u32 s50, s50, s51            ; tg*131072 + j*16")
            A(f"  v_lshlrev_b32 v{X+2}, 9, v3         ; lane*512")
            for m in range(1,4): A(f"  s_add_u32 s{56+m}, s50, {32768*m}")
        else:
            A("  s_lshl_b32 s51, s49, 12")
            A("  s_add_u32 s50, s50, s51            ; tg*131072 + j*4096")
            A(f"  v_lshlrev_b32 v{X+2}, 4, v3")
        for _ in range(rdelay): A("  s_sleep 32")
        A("  s_mov_b32 s42, 0")
        A("L_rpoll:")
        for m in range(4):
            if h1N: A(f"  buffer_load_dwordx4 v[{T+4*m}:{T+4*m+3}], v{X+2}, s[28:31], s{50 if m==0 else 56+m} offen {rpf}")
            else: A(f"  buffer_load_dwordx4 v[{T+4*m}:{T+4*m+3}], v{X+2}, s[28:31], s50 offen offset:{1024*m} {rpf}")
        A("  s_waitcnt vmcnt(0)")
        for m in range(8): A(f"  v_xor_b32 v{T+2*m+1}, s56, v{T+2*m+1}")
        A(f"  v_or3_b32 v{X+3}, v{T+1}, v{T+3}, v{T+5}")
        A(f"  v_or3_b32 v{X+3}, v{X+3}, v{T+7}, v{T+9}")
        A(f"  v_or3_b32 v{X+3}, v{X+3}, v{T+11}, v{T+13}")
        A(f"  v_or_b32 v{X+3}, v{X+3}, v{T+15}")
        A(f"  v_cmp_ne_u32 vcc, 0, v{X+3}")
        A("  s_cbranch_vccz L_rok")
        if rmask:
            A("  s_mov_b64 exec, vcc")
        if rsleep: A(f"  s_sleep {rsleep}")
        A("  s_add_u32 s42, s42, 1")
        A(f"  s_cmp_lt_u32 s42, {SPIN}")
        A("  s_cbranch_scc1 L_rpoll")
        A("L_rok:")
        if rmask: A("  s_mov_b64 exec, -1")
        stamp(8)
        if ts: A("  s_mov_b32 s82, s42")
        A(f"  v_add_f32 v{T}, v{T}, v{T+4}")
        A(f"  v_add_f32 v{T+2}, v{T+2}, v{T+6}")
        A(f"  v_add_f32 v{T+8}, v{T+8}, v{T+12}")
        A(f"  v_add_f32 v{T+10}, v{T+10}, v{T+14}")
        A(f"  v_add_f32 v{T}, v{T}, v{T+8}")
        A(f"  v_add_f32 v{T+2}, v{T+2}, v{T+10}")
        A("  s_nop 1")
        A(f"  v_permlane32_swap_b32 v{T}, v{T+2}")
        A(f"  v_add_f32 v{T}, v{T}, v{T+2}")
        A(f"  v_mov_b32 v{T+1}, v{T}")
        A("  s_nop 1")
        A(f"  v_permlane16_swap_b32 v{T}, v{T+1}")
        A(f"  v_add_f32 v{T}, v{T}, v{T+1}")
        for rr in (8, 4, 2, 1):
            A("  s_nop 1")
            A(f"  v_add_f32_dpp v{T}, v{T}, v{T} row_ror:{rr} row_mask:0xf bank_mask:0xf")
        A(f"  v_lshlrev_b32 v{X+1}, 16, v{X+1}    ; w as f32")
        A("  s_mov_b32 s52, 0x36800000           ; 2^-18")
        A("  s_mov_b32 s53, 0xbfb8aa3b           ; -log2(e)")
        def rnd(reg):
            A(f"  v_cvt_pk_bf16_f32 v{reg}, v{reg}, v{reg}")
            A(f"  v_and_b32 v{reg}, s36, v{reg}")
        rnd(T)
        A(f"  v_mul_f32 v{T}, s52, v{T}")
        rnd(T)
        A(f"  v_mul_f32 v{T}, v{X+1}, v{T}")
        rnd(T)
        A(f"  v_add_f32 v{T}, 0, v{T}")
        A(f"  v_mul_f32 v{T}, s53, v{T}")
        A(f"  v_exp_f32 v{T}, v{T}")
        A("  s_nop 0")
        A(f"  v_add_f32 v{T}, 1.0, v{T}")
        A(f"  v_rcp_f32 v{T}, v{T}")
        A("  s_nop 0")
        rnd(T)
        A(f"  v_lshrrev_b32 v{T+1}, 5, v3")
        A(f"  s_lshl_b32 s50, s45, 3")
        A(f"  v_lshl_add_u32 v{T+1}, v{T+1}, 2, s50     ; q*8 + v*4")
        A(f"  v_mov_b32 v{T+2}, 1")
        A("  s_mov_b32 exec_lo, 1")
        A("  s_mov_b32 exec_hi, 1")
        A(f"  ds_write_b32 v{T+1}, v{T} offset:{L_RED}")
        A("  s_waitcnt lgkmcnt(0)")
        A("  s_mov_b64 exec, 1")
        A(f"  ds_add_rtn_u32 v{T+3}, v7, v{T+2} offset:{L_CTL+48}")
        A("  s_waitcnt lgkmcnt(0)")
        A("  s_mov_b64 exec, -1")
        A(f"  v_readfirstlane_b32 s41, v{T+3}")
        A("  s_cmp_eq_u32 s41, 3")
        A("  s_cbranch_scc0 L_nored")
        A(f"  v_and_b32 v{T+2}, 7, v3")
        A(f"  v_lshlrev_b32 v{T+2}, 2, v{T+2}")
        A("  s_mov_b64 exec, 0xffff")
        A(f"  ds_read_b32 v{T}, v{T+2} offset:{L_RED}")
        A(f"  v_lshlrev_b32 v{T+2}, 3, v3")
        A(f"  v_mov_b32 v{T+1}, s56")
        A("  s_lshl_b32 s50, s2, 7")
        A(f"  s_add_u32 s50, s50, {H2}")
        A("  s_waitcnt lgkmcnt(0)")
        A(f"  buffer_store_dwordx2 v[{T}:{T+1}], v{T+2}, s[28:31], s50 offen sc1")
        stamp(9)
        if ts:
            A("  s_waitcnt vmcnt(0)")
            stamp(10)
        A("  s_mov_b64 exec, -1")
    A("L_nored:")
    if nopoll:
        for i in (4,5,6): stamp(i)
        A("  s_branch L_fin")
    A("  s_cmp_eq_u32 s45, 3")
    A("  s_cbranch_scc0 L_nopoll")
    if semi:
        A("  s_cmp_eq_u32 s44, 2")
        A("  s_cbranch_scc1 L_semi_p")
        lds_spin(f"v7 offset:{L_CTL+24}", 4, "semp")
        A("L_semi_p:")
    A(f"  v_lshrrev_b32 v{X+2}, 3, v3")
    A(f"  v_lshlrev_b32 v{X+2}, 7, v{X+2}")
    A(f"  v_and_b32 v{X+3}, 7, v3")
    A(f"  v_lshl_add_u32 v{X+2}, v{X+3}, 3, v{X+2}   ; (l>>3)*128 + (l&7)*8")
    A("  s_lshl_b32 s50, s44, 10")
    A(f"  s_add_u32 s50, s50, {H2}")
    for _ in range(wdelay): A("  s_sleep 32")
    A("  s_mov_b32 s42, 0")
    A("L_wpoll:")
    A(f"  buffer_load_dwordx2 v[{T}:{T+1}], v{X+2}, s[28:31], s50 offen {wpf}")
    A("  s_waitcnt vmcnt(0)")
    A(f"  v_cmp_ne_u32 vcc, s56, v{T+1}")
    A("  s_cbranch_vccz L_wok")
    if sleep_poll: A(f"  s_sleep {sleep_poll}")
    A("  s_add_u32 s42, s42, 1")
    A(f"  s_cmp_lt_u32 s42, {SPIN}")
    A("  s_cbranch_scc1 L_wpoll")
    A("L_wok:")
    A(f"  v_lshl_add_u32 v{T+1}, v5, 3, v4")
    A(f"  v_lshlrev_b32 v{T+1}, 2, v{T+1}")
    A("  s_lshl_b32 s50, s44, 8")
    A(f"  v_add_u32 v{T+1}, s50, v{T+1}")
    A(f"  ds_write_b32 v{T+1}, v{T} offset:{L_S}")
    A(f"  v_mov_b32 v{T+2}, 1")
    A("  s_waitcnt lgkmcnt(0)")
    A("  s_mov_b64 exec, 1")
    A(f"  ds_write_b32 v{X}, v{T+2} offset:{L_CTL+12}")
    A("  s_mov_b64 exec, -1")
    A("  s_cmp_eq_u32 s2, 0")
    A("  s_cbranch_scc0 L_nopoll")
    A("  s_cmp_eq_u32 s44, 2")
    A("  s_cbranch_scc0 L_nopoll")
    lds_spin(f"v7 offset:{L_CTL+12}", 1, "e0")
    lds_spin(f"v7 offset:{L_CTL+16}", 1, "e1")
    A(f"  v_mov_b32 v{T+2}, s56")
    A(f"  s_mov_b32 s50, {EOFF}")
    A("  s_mov_b64 exec, 1")
    A(f"  buffer_store_dword v{T+2}, off, s[28:31], s50 sc1")
    A("  s_mov_b64 exec, -1")
    A("L_nopoll:")
    lds_spin(f"v{X} offset:{L_CTL+12}", 1, "sf")
    stamp(4)
    A("  s_lshl_b32 s50, s44, 8")
    A(f"  v_lshl_add_u32 v{T}, v5, 5, s50     ; g*256 + (l&7)*32")
    A(f"  ds_read_b128 v[{ACC}:{ACC+3}], v{T} offset:{L_S}")
    A(f"  ds_read_b128 v[{ACC+4}:{ACC+7}], v{T} offset:{L_S+16}")
    if chain:
        if schain:
            A("  s_add_u32 s47, s44, 3")
            lds_spin(f"v{X+7} offset:{L_CTL+32}", "s47", "sch")
        else:
            A("  s_cmp_eq_u32 s44, 2")
            A("  s_cbranch_scc1 L_nogate")
            lds_spin(f"v{X+7} offset:{L_CTL+32}", 3, "sch")
            A("L_nogate:")
        if prio: A("  s_setprio 0")
    elif sgate is not None:
        A("  s_cmp_eq_u32 s44, 2")
        A("  s_cbranch_scc1 L_nogate")
        lds_spin(f"v7 offset:{L_CTL+24}", 4, "is")
        lds_spin(f"v7 offset:{L_CTL+12+4*sgate}", 1, "sg")
        if prio: A("  s_setprio 0")
        A("L_nogate:")
    elif late or semi:
        if evengate is not None:
            A("  s_getreg_b32 s84, hwreg(HW_REG_XCC_ID)")
            A("  s_and_b32 s84, s84, 1")
            A("  s_cmp_eq_u32 s84, 0")
            A("  s_cbranch_scc0 L_noeven")
            A(f"  s_cmp_lt_u32 s44, {evengate}")
            A("  s_cbranch_scc0 L_noeven")
            lds_spin(f"v7 offset:{L_CTL+12+4*evengate}", 1, "eg")
            A("L_noeven:")
        if prio: A("  s_setprio 0")
    elif not early_store:
        A("  s_cmp_eq_u32 s44, 2")
        A("  s_cbranch_scc1 L_nogate")
        lds_spin(f"v7 offset:{L_CTL+24}", 4, "is")
        if prio: A("  s_setprio 0")
        A("L_nogate:")
    A("  s_mov_b32 s38, s37")
    A("  s_waitcnt lgkmcnt(0)")
    stamp(5)
    if stop == 3:
        if chain and schain:
            A(f"  v_mov_b32 v{T}, 1")
            A("  s_mov_b64 exec, 1")
            A(f"  ds_add_u32 v{X+7}, v{T} offset:{L_CTL+32}")
            A("  s_mov_b64 exec, -1")
        stamp(6)
        A("  s_branch L_fin")
    if sonly:
        A("  s_cmp_eq_u32 s44, 0")
        A("  s_cbranch_scc1 L_nosonly")
        lds_spin(f"v{X+7} offset:{L_CTL+32}", "s44", "so")
        A("L_nosonly:")
    if boost2: A("  s_setprio 0")
    if evenswin:
        A("  s_getreg_b32 s84, hwreg(HW_REG_XCC_ID)")
        A("  s_and_b32 s84, s84, 1")
        A("  s_xor_b32 s84, s84, 1")
        if evenmin:
            A(f"  s_cmp_ge_u32 s44, {evenmin}")
            A("  s_cselect_b32 s84, s84, 0")
        A("  s_mov_b32 s85, 0")
        A("  s_mov_b64 vcc, s[84:85]")
    if dry is not None: A("L_storecode:")
    for k in range(NQ):
        r = DATA + 4 * k
        for d in range(4):
            t0 = T + 2 * d
            A(f"  v_lshlrev_b32 v{t0}, 16, v{r+d}")
            A(f"  v_and_b32 v{t0+1}, s36, v{r+d}")
            if pk:
                A(f"  v_pk_mul_f32 v[{t0}:{t0+1}], v[{t0}:{t0+1}], v[{ACC+2*d}:{ACC+2*d+1}]")
            else:
                A(f"  v_mul_f32 v{t0}, v{t0}, v{ACC+2*d}")
                A(f"  v_mul_f32 v{t0+1}, v{t0+1}, v{ACC+2*d+1}")
        for d in range(4):
            t0 = T + 2 * d
            A(f"  v_cvt_pk_bf16_f32 v{r+d}, v{t0}, v{t0+1}")
        if swin and k >= swin and k < swinn: A(f"  s_waitcnt vmcnt({swin-1})")
        ew = evenswin if k < evenks else evenb
        if ew and k >= max(ew, evenk0):
            A(f"  s_cbranch_vccz L_ew{k}")
            A(f"  s_waitcnt vmcnt({ew-1})")
            A(f"L_ew{k}:")
        if dry is not None: A(f"  s_cbranch_execz L_sk{k}")
        if layout == "R":
            A(f"  buffer_store_dwordx4 v[{r}:{r+3}], v1, s[20:23], s38 offen offset:{(k & 1) * 3072 if runlen > 1 else 0} {stf}".rstrip())
            if dry is not None: A(f"L_sk{k}:")
            if k != NQ - 1:
                if runlen == 1: A(f"  s_add_u32 s38, s38, {stride}")
                elif k & 1:
                    step = 6144 if ((k + 1) % runlen) else stride - (runlen - 2) * 3072
                    A(f"  s_add_u32 s38, s38, {step}")
        elif stride < 4096:
            off = (k & 1) * stride
            A(f"  buffer_store_dwordx4 v[{r}:{r+3}], v1, s[20:23], s38 offen offset:{off} {stf}".rstrip())
            if dry is not None: A(f"L_sk{k}:")
            if (k & 1) and k != NQ - 1: A("  s_add_u32 s38, s38, s46")
        else:
            A(f"  buffer_store_dwordx4 v[{r}:{r+3}], v1, s[20:23], s38 offen {stf}".rstrip())
            if dry is not None: A(f"L_sk{k}:")
            if k != NQ - 1: A("  s_add_u32 s38, s38, s46")
    if dry is not None:
        A("  s_cmp_eq_u32 s83, 1")
        A("  s_cbranch_scc1 L_dryback")
    if (chain and schain) or sonly:
        A(f"  v_mov_b32 v{T}, 1")
        A("  s_mov_b64 exec, 1")
        A(f"  ds_add_u32 v{X+7}, v{T} offset:{L_CTL+32}")
        A("  s_mov_b64 exec, -1")
    stamp(6)
    A("L_fin:")
    if ts and meas:
        a, b, M = meas
        A("  s_waitcnt vmcnt(0)")
        stamp(7)
        A("  s_waitcnt lgkmcnt(0)")
        A("  s_mul_i32 s15, s2, 12"); A("  s_add_u32 s15, s15, s14")
        A(f"  s_cmp_eq_u32 s15, {meas_wave[0]}")
        A("  s_cbranch_scc0 L_end")
        A(f"  s_sub_u32 s46, s{60+2*b}, s{60+2*a}")
        A(f"  s_mul_i32 s46, s46, {M}")
        A("  s_min_u32 s46, s46, 200000")
        A("L_spin:")
        A("  s_memrealtime s[48:49]")
        A("  s_waitcnt lgkmcnt(0)")
        A("  s_sub_u32 s47, s48, s74")
        A("  s_cmp_lt_u32 s47, s46")
        A("  s_cbranch_scc1 L_spin")
    elif ts:
        A("  s_waitcnt vmcnt(0)")
        stamp(7)
        A("  s_getreg_b32 s50, hwreg(HW_REG_XCC_ID)")
        A("  s_and_b32 s50, s50, 0xf")
        A("  s_waitcnt lgkmcnt(0)")
        A("  s_mov_b64 exec, 1")
        A("  s_mul_i32 s15, s2, 12"); A("  s_add_u32 s15, s15, s14")
        A(f"  s_mul_i32 s43, s15, 48")
        A(f"  s_add_u32 s43, s43, {TSOFF}")
        for i in range(8):
            A(f"  v_mov_b32 v{T+i}, s{60+2*i}")
            A(f"  buffer_store_dword v{T+i}, off, s[28:31], s43 offset:{4*i}")
        A(f"  v_mov_b32 v{T+8}, s50")
        A(f"  buffer_store_dword v{T+8}, off, s[28:31], s43 offset:32")
        for i in (8,9,10):
            A(f"  v_mov_b32 v{T+i+1}, s{60+2*i}")
            A(f"  buffer_store_dword v{T+i+1}, off, s[28:31], s43 offset:{4*(i+1)}")
    A("L_end:")
    A("  s_endpgm")
    A('.section .rodata,"a"'); A(".p2align 6"); A(f".amdhsa_kernel {NAME}")
    A("  .amdhsa_next_free_vgpr 168"); A("  .amdhsa_next_free_sgpr 96"); A("  .amdhsa_accum_offset 168")
    A("  .amdhsa_group_segment_fixed_size 0"); A("  .amdhsa_kernarg_size 40"); A("  .amdhsa_user_sgpr_count 2")
    A("  .amdhsa_user_sgpr_kernarg_segment_ptr 1"); A("  .amdhsa_system_sgpr_workgroup_id_x 1"); A("  .amdhsa_float_denorm_mode_32 3")
    A(".end_amdhsa_kernel")
    return "\n".join(L) + "\n"
meas_wave = [0]
if __name__ == "__main__":
    ap = argparse.ArgumentParser()
    ap.add_argument("-o", default="-"); ap.add_argument("--layout", default="A"); ap.add_argument("--ldf", default="nt"); ap.add_argument("--stf", default="sc1")
    ap.add_argument("--ts", action="store_true"); ap.add_argument("--swin", type=int, default=0); ap.add_argument("--noprio", action="store_true")
    ap.add_argument("--meas", default=None); ap.add_argument("--mw", type=int, default=0); ap.add_argument("--sp", type=int, default=4); ap.add_argument("--sl", type=int, default=1)
    ap.add_argument("--early", action="store_true"); ap.add_argument("--gate", default="issue"); ap.add_argument("--pk", action="store_true"); ap.add_argument("--lwin", type=int, default=0); ap.add_argument("--chain", action="store_true"); ap.add_argument("--noschain", action="store_true"); ap.add_argument("--rsleep", type=int, default=8); ap.add_argument("--clrw", type=int, default=8); ap.add_argument("--stop", type=int, default=0); ap.add_argument("--noclr", action="store_true"); ap.add_argument("--clrmode", default="sc"); ap.add_argument("--sigmode", default="atomic"); ap.add_argument("--rpf", default="sc1"); ap.add_argument("--wpf", default="sc1"); ap.add_argument("--pubf", default="sc1"); ap.add_argument("--rdelay", type=int, default=0); ap.add_argument("--wdelay", type=int, default=0); ap.add_argument("--h1T", action="store_true"); ap.add_argument("--warm", default=None); ap.add_argument("--rmask", action="store_true"); ap.add_argument("--rwait", action="store_true"); ap.add_argument("--late", action="store_true"); ap.add_argument("--nored", action="store_true"); ap.add_argument("--nopoll", action="store_true"); ap.add_argument("--half", action="store_true"); ap.add_argument("--sgate", type=int, default=None); ap.add_argument("--semi", action="store_true"); ap.add_argument("--sigk", type=int, default=32); ap.add_argument("--dry", type=int, default=None); ap.add_argument("--prostamp", action="store_true"); ap.add_argument("--swinn", type=int, default=32); ap.add_argument("--fastpro", action="store_true"); ap.add_argument("--evengate", type=int, default=None); ap.add_argument("--evenswin", type=int, default=0); ap.add_argument("--evenmin", type=int, default=0); ap.add_argument("--evenk0", type=int, default=0); ap.add_argument("--runlen", type=int, default=0); ap.add_argument("--lw1", type=int, default=0); ap.add_argument("--lw2", type=int, default=0); ap.add_argument("--boost2", action="store_true"); ap.add_argument("--sonly", action="store_true"); ap.add_argument("--evenb", type=int, default=0); ap.add_argument("--evenks", type=int, default=32)
    a = ap.parse_args()
    meas_wave[0] = a.mw
    s = gen(layout=a.layout, ldf=a.ldf, stf=a.stf, ts=a.ts, swin=a.swin, prio=not a.noprio, meas=tuple(int(x) for x in a.meas.split(",")) if a.meas else None,
            sleep_poll=a.sp, sleep_lds=a.sl, early_store=a.early, gate=a.gate, pk=a.pk, lwin=a.lwin, chain=a.chain, schain=not a.noschain, rsleep=a.rsleep, clrw=(99 if a.noclr else a.clrw), stop=a.stop, clrmode=a.clrmode, sigmode=a.sigmode, rpf=a.rpf, wpf=a.wpf, pubf=a.pubf, rdelay=a.rdelay, wdelay=a.wdelay, h1N=not a.h1T, warm=a.warm, rmask=a.rmask, rwait=a.rwait, late=a.late, nored=a.nored, nopoll=a.nopoll, half=a.half, sgate=a.sgate, semi=a.semi, sigk=a.sigk, dry=a.dry, prostamp=a.prostamp, swinn=a.swinn, fastpro=a.fastpro, evengate=a.evengate, evenswin=a.evenswin, evenmin=a.evenmin, evenk0=a.evenk0, runlen=a.runlen, lw1=a.lw1, lw2=a.lw2, boost2=a.boost2, sonly=a.sonly, evenb=a.evenb, evenks=a.evenks)
    if a.o == "-": sys.stdout.write(s)
    else: open(a.o, "w").write(s)
```

```python
import sys, argparse
from gen import HEADER, NAME, XBYTES
NWG = 256

DOC = """
ECA channel attention: out = x * sigmoid(w * mean_hw(x)), x = [262144 pixels][192 channels] bf16.
One persistent launch: 256 workgroups (one per CU, 12 waves x 168 VGPRs, all co-resident) keep the whole
96 MiB input in registers, so x is read once and out is written once.
 - A pixel is three 128-byte lines = three groups of 64 channels. Wave w handles group g = w>>2; it loads
   32 x (8 pixels x 128 bytes) into v32..v159 with at most 5 loads in flight (all 12 waves stream together,
   the older group-0 waves finish first) and sums them per channel in fp32.
 - Per group: the 4 waves combine through LDS and the last one publishes 64 {sum, tag} pairs (4 full lines).
   8 reducer workgroups per group gather one half line from all 256 workgroups, finish the sum, apply the
   reference rounding steps (bf16 sum, /HW, *w, sigmoid) and publish one line of {s, tag} pairs; one wave per
   workgroup and group polls these 8 lines and hands s to the other waves through LDS.
   The hand-offs of group 0/1 run under the remaining loads, that of group 2 under the stores of groups 0/1.
 - tag = (word left in d_ws) + constant; it only tells this launch's hand-offs from an earlier launch's.
   Workgroup 0 advances that word once every hand-off of the launch is known to be complete.
 - Scale and store (write-through). Dies with an even id keep at most 2-3 stores per wave in flight: two dies
   share one write link and the even one otherwise wins it (speed only).
All spins are bounded.
"""

def gen(layout="A", ldf="nt", stf="sc1", ts=False, swin=0, prio=True, meas=None, sleep_poll=4, sleep_lds=1, early_store=False, gate="issue", pk=False, lwin=0, chain=False, schain=True, clrw=8, rsleep=8, csleep=8, stop=0, clrmode="sc", sigmode="atomic", rpf="sc1", wpf="sc1", pubf="sc1", rdelay=0, wdelay=0, h1N=True, warm=None, rmask=False, rwait=False, late=False, nored=False, nopoll=False, onepoll=False, half=False, sgate=None, semi=False, sigk=32, dry=None, prostamp=False, swinn=32, fastpro=False, evengate=None, evenswin=0, evenmin=0, evenk0=0, runlen=0, lw1=0, lw2=0, boost2=False, sonly=False, evenb=0, evenks=32, wsched=None, g2gate=False, dryafter=False, wgperm=0):
    L = []; A = L.append
    NW = 12; NQ = 32
    ACC = 8; T = 16; DATA = 32; X = 160
    H1 = 0; H2 = 3 * 131072; EOFF = H2 + 4096; TSOFF = 512 * 1024 + 65536
    L_SLOT = 0
    L_S = 3072
    L_RED = 3072 + 768
    L_CTL = 3072 + 768 + 128
    lds = L_CTL + 64
    SPIN = "0x20000"
    A(HEADER.rstrip("\n"))
    A(f"; @launch grid=({NWG},1,1) block=({NW*64},1,1) lds={lds}")
    if not ts:
        for l in DOC.strip("\n").split("\n"): A("; " + l if l else ";")
    A('.amdgcn_target "amdgcn-amd-amdhsa--gfx950"'); A(".text"); A(f".globl {NAME}"); A(".p2align 8"); A(f".type {NAME},@function"); A(f"{NAME}:")
    def stamp(i):
        if ts: A(f"  s_memrealtime s[{60+2*i}:{61+2*i}]")
    uid = [0]
    def lab(s):
        uid[0] += 1
        return f"L_{s}_{uid[0]}"
    def lds_spin(off, target, name):
        l0, l1 = lab(name), lab(name + "ok")
        A("  s_mov_b32 s42, 0")
        A(f"{l0}:")
        A(f"  ds_read_b32 v{X+6}, {off}")
        A("  s_waitcnt lgkmcnt(0)")
        A(f"  v_readfirstlane_b32 s41, v{X+6}")
        A(f"  s_cmp_ge_u32 s41, {target}")
        A(f"  s_cbranch_scc1 {l1}")
        if sleep_lds: A(f"  s_sleep {sleep_lds}")
        A("  s_add_u32 s42, s42, 1")
        A(f"  s_cmp_lt_u32 s42, 0x400000")
        A(f"  s_cbranch_scc1 {l0}")
        A(f"{l1}:")
    def cnt_check(name):
        l0, l1 = lab(name), lab(name + "ok")
        A("  s_mov_b32 s42, 0")
        A(f"{l0}:")
        A(f"  buffer_load_dword v{X+6}, off, s[24:27], 0 sc1")
        A("  s_waitcnt vmcnt(0)")
        A(f"  v_readfirstlane_b32 s41, v{X+6}")
        A(f"  s_cmp_ge_u32 s41, {NWG}")
        A(f"  s_cbranch_scc1 {l1}")
        if csleep: A(f"  s_sleep {csleep}")
        A("  s_add_u32 s42, s42, 1")
        A(f"  s_cmp_lt_u32 s42, {SPIN}")
        A(f"  s_cbranch_scc1 {l0}")
        A(f"{l1}:")
    A(f"  s_cmp_ge_u32 s2, {NWG}")
    A("  s_cbranch_scc1 L_end")
    stamp(0)
    if ts:
        for i in (8,9,10): A(f"  s_mov_b32 s{60+2*i}, 0")
    if fastpro:
        A("  s_load_dwordx2 s[16:17], s[0:1], 0     ; x")
        A("  s_load_dwordx2 s[20:21], s[0:1], 16    ; out")
        A("  s_load_dwordx2 s[28:29], s[0:1], 32    ; ws")
        A("  s_load_dwordx2 s[32:33], s[0:1], 8     ; w")
        A("  v_lshrrev_b32 v2, 6, v0")
        A("  v_and_b32 v3, 63, v0")
        A("  v_lshrrev_b32 v4, 3, v3            ; lane>>3")
        A("  v_readfirstlane_b32 s14, v2        ; w")
        A("  v_and_b32 v5, 7, v3                ; lane&7")
        A("  v_mul_u32_u24 v6, 0x180, v4")
        A("  v_lshl_add_u32 v1, v5, 4, v6")
        A("  v_mov_b32 v7, 0")
        A("  s_lshr_b32 s44, s14, 2             ; g")
        A("  s_and_b32 s45, s14, 3              ; q")
        A(f"  s_mov_b32 s18, {XBYTES}"); A("  s_mov_b32 s19, 0x20000")
        if layout == "A":
            A("  s_mul_i32 s37, s2, 393216"); A("  s_mul_i32 s38, s45, 98304"); stride = 3072
        elif layout == "C":
            A("  s_mul_i32 s37, s2, 393216"); A("  s_mul_i32 s38, s45, 3072"); stride = 4 * 3072
        elif layout == "B" and wgperm:
            if wgperm == 1:
                A("  s_and_b32 s37, s2, 7"); A("  s_lshl_b32 s37, s37, 5"); A("  s_lshr_b32 s38, s2, 3"); A("  s_or_b32 s37, s37, s38")
            elif wgperm == 2:
                A("  s_and_b32 s37, s2, 7"); A("  s_lshl_b32 s37, s37, 2"); A("  s_lshr_b32 s38, s2, 3"); A("  s_and_b32 s46, s38, 3"); A("  s_or_b32 s37, s37, s46")
                A("  s_lshr_b32 s38, s38, 2"); A("  s_lshl_b32 s38, s38, 5"); A("  s_or_b32 s37, s37, s38")
            A("  s_mul_i32 s37, s37, 12288"); A("  s_mul_i32 s38, s45, 3072"); stride = 1024 * 3072
        elif layout == "B":
            A("  s_mul_i32 s37, s2, 12288"); A("  s_mul_i32 s38, s45, 3072"); stride = 1024 * 3072
        elif layout == "R":
            A(f"  s_mul_i32 s37, s2, {12288*runlen}"); A(f"  s_mul_i32 s38, s45, {3072*runlen}"); stride = 1024 * 3072 * runlen
        A("  s_add_u32 s37, s37, s38")
        A("  s_lshl_b32 s38, s44, 7")
        A("  s_add_u32 s37, s37, s38")
        A("  s_cmp_eq_u32 s14, 0")
        A("  s_cbranch_scc0 L_noinit")
        A("  v_lshlrev_b32 v6, 2, v3")
        A("  s_mov_b64 exec, 0xffff")
        A(f"  ds_write_b32 v6, v7 offset:{L_CTL}")
        A("  s_mov_b64 exec, -1")
        A("  s_waitcnt lgkmcnt(0)")
        A("L_noinit:")
        A("  s_barrier")
        if prio:
            A("  s_cmp_eq_u32 s44, 0"); A("  s_cbranch_scc0 L_p1"); A("  s_setprio 2"); A("  s_branch L_p2")
            A("L_p1:"); A("  s_cmp_eq_u32 s44, 1"); A("  s_cbranch_scc0 L_p2"); A("  s_setprio 1"); A("L_p2:")
        A("  s_mov_b32 s36, 0xffff0000")
        A("  s_waitcnt lgkmcnt(0)")
        if prostamp: stamp(9)
    else:
        A("  s_load_dwordx4 s[4:7], s[0:1], 0")
        A("  s_load_dwordx4 s[8:11], s[0:1], 16")
        A("  s_load_dwordx2 s[12:13], s[0:1], 32")
        A("  v_lshrrev_b32 v2, 6, v0")
        A("  v_and_b32 v3, 63, v0")
        A("  v_lshrrev_b32 v4, 3, v3            ; lane>>3")
        A("  v_readfirstlane_b32 s14, v2        ; w")
        A("  v_and_b32 v5, 7, v3                ; lane&7")
        A("  v_mul_u32_u24 v6, 0x180, v4")
        A("  v_lshl_add_u32 v1, v5, 4, v6")
        A("  v_mov_b32 v7, 0")
        A("  s_mov_b32 s36, 0xffff0000")
        A("  s_lshr_b32 s44, s14, 2             ; g")
        A("  s_and_b32 s45, s14, 3              ; q")
        A("  s_cmp_eq_u32 s14, 0")
        A("  s_cbranch_scc0 L_noinit")
        A("  v_lshlrev_b32 v6, 2, v3")
        A("  s_mov_b64 exec, 0xffff")
        A(f"  ds_write_b32 v6, v7 offset:{L_CTL}")
        A("  s_mov_b64 exec, -1")
        A("L_noinit:")
        if layout == "A":
            A("  s_mul_i32 s37, s2, 393216")
            A("  s_mul_i32 s38, s45, 98304")
            stride = 3072
        elif layout == "C":
            A("  s_mul_i32 s37, s2, 393216")
            A("  s_mul_i32 s38, s45, 3072")
            stride = 4 * 3072
        elif layout == "B":
            A("  s_mul_i32 s37, s2, 12288")
            A("  s_mul_i32 s38, s45, 3072")
            stride = 1024 * 3072
        A("  s_add_u32 s37, s37, s38")
        A("  s_lshl_b32 s38, s44, 7")
        A("  s_add_u32 s37, s37, s38")
        if prio:
            A("  s_cmp_eq_u32 s44, 0"); A("  s_cbranch_scc0 L_p1"); A("  s_setprio 2"); A("  s_branch L_p2")
            A("L_p1:"); A("  s_cmp_eq_u32 s44, 1"); A("  s_cbranch_scc0 L_p2"); A("  s_setprio 1"); A("L_p2:")
        A("  s_waitcnt lgkmcnt(0)")
        if prostamp: stamp(9)
        A("  s_barrier")
        for base, src, n in ((16, 4, XBYTES), (20, 8, XBYTES), (24, 10, 256), (28, 12, 0x100000), (32, 6, 2)):
            A(f"  s_mov_b32 s{base}, s{src}"); A(f"  s_mov_b32 s{base+1}, s{src+1}"); A(f"  s_mov_b32 s{base+2}, {n}"); A(f"  s_mov_b32 s{base+3}, 0x20000")
    def deferred():
        if fastpro:
            A(f"  s_mov_b32 s22, {XBYTES}"); A("  s_mov_b32 s23, 0x20000")
            A("  s_mov_b32 s30, 0x100000"); A("  s_mov_b32 s31, 0x20000")
            A("  s_mov_b32 s34, 2"); A("  s_mov_b32 s35, 0x20000")
            A("  s_mov_b32 s12, s28"); A("  s_mov_b32 s13, s29")
        A(f"  s_add_u32 s54, s12, {EOFF}")
        A("  s_addc_u32 s55, s13, 0")
        A("  s_load_dword s56, s[54:55], 0")
        if h1N:
            A("  v_lshlrev_b32 v2, 3, v3            ; lane*8")
            A("  s_lshl_b32 s39, s2, 9              ; wg*512")
        else:
            A("  v_lshrrev_b32 v2, 1, v3")
            A("  v_lshlrev_b32 v2, 12, v2")
            A("  v_and_b32 v6, 1, v3")
            A("  v_lshl_add_u32 v2, v6, 3, v2")
            A("  s_lshl_b32 s39, s2, 4              ; wg*16")
    if not fastpro: deferred()
    if warm is not None:
        A("  s_cmp_eq_u32 s14, 8")
        A("  s_cbranch_scc0 L_nowarm")
        if prio: A("  s_setprio 3")
        A(f"  v_lshlrev_b32 v{T}, 4, v3")
        A("  s_mul_i32 s40, s2, 1536")
        A(f"  buffer_load_dwordx4 v[{T+4}:{T+7}], v{T}, s[28:31], s40 offen {warm}".rstrip())
        A("  s_mov_b32 exec_hi, 0")
        A(f"  buffer_load_dwordx4 v[{T+8}:{T+11}], v{T}, s[28:31], s40 offen offset:1024 {warm}".rstrip())
        A("  s_mov_b64 exec, -1")
        if prio: A("  s_setprio 0")
        A("L_nowarm:")
    A(f"  s_lshl_b32 s47, s45, 2")
    A(f"  v_mov_b32 v{X+7}, s47")
    if chain:
        A("  s_cmp_eq_u32 s44, 0")
        A("  s_cbranch_scc1 L_nochain")
        lds_spin(f"v{X+7} offset:{L_CTL+32}", "s44", "ch")
        A("L_nochain:")
    if prostamp: stamp(10)
    A("  s_mov_b32 s38, s37")
    A(f"  s_mov_b32 s46, {stride*2 if stride*2 < (1<<31) and stride < 4096 else stride}")
    def accum(k):
        r = DATA + 4 * k
        for d in range(4):
            a0 = ACC + 2 * d
            if k == 0:
                A(f"  v_lshlrev_b32 v{a0}, 16, v{r+d}")
                A(f"  v_and_b32 v{a0+1}, s36, v{r+d}")
            else:
                t0 = T + 2 * d
                A(f"  v_lshlrev_b32 v{t0}, 16, v{r+d}")
                A(f"  v_and_b32 v{t0+1}, s36, v{r+d}")
                A(f"  v_add_f32 v{a0}, v{a0}, v{t0}")
                A(f"  v_add_f32 v{a0+1}, v{a0+1}, v{t0+1}")
    for k in range(NQ):
        r = DATA + 4 * k
        if lwin and k >= lwin: A(f"  s_waitcnt vmcnt({lwin-1})")
        if wsched:
            wa, wb = wsched(k)
            if wa < lwin and k >= wa:
                A("  s_cmp_eq_u32 s44, 0"); A(f"  s_cbranch_scc0 L_wa_{k}"); A(f"  s_waitcnt vmcnt({wa-1})"); A(f"L_wa_{k}:")
            if wb < lwin and k >= wb:
                A("  s_cmp_ge_u32 s44, 1"); A(f"  s_cbranch_scc0 L_wb_{k}"); A(f"  s_waitcnt vmcnt({wb-1})"); A(f"L_wb_{k}:")
        if lw1 and k >= lw1 and lw1 < lwin:
            A("  s_cmp_ge_u32 s44, 1"); A(f"  s_cbranch_scc0 L_lw1_{k}"); A(f"  s_waitcnt vmcnt({lw1-1})"); A(f"L_lw1_{k}:")
        if lw2 and k >= lw2 and lw2 < (lw1 if lw1 else lwin):
            A("  s_cmp_eq_u32 s44, 2"); A(f"  s_cbranch_scc0 L_lw2_{k}"); A(f"  s_waitcnt vmcnt({lw2-1})"); A(f"L_lw2_{k}:")
        if layout == "R":
            A(f"  buffer_load_dwordx4 v[{r}:{r+3}], v1, s[16:19], s38 offen offset:{(k & 1) * 3072 if runlen > 1 else 0} {ldf}".rstrip())
            if k != NQ - 1:
                if runlen == 1: A(f"  s_add_u32 s38, s38, {stride}")
                elif k & 1:
                    step = 6144 if ((k + 1) % runlen) else stride - (runlen - 2) * 3072
                    A(f"  s_add_u32 s38, s38, {step}")
        elif stride < 4096:
            off = (k & 1) * stride
            A(f"  buffer_load_dwordx4 v[{r}:{r+3}], v1, s[16:19], s38 offen offset:{off} {ldf}".rstrip())
            if (k & 1) and k != NQ - 1: A("  s_add_u32 s38, s38, s46")
        else:
            A(f"  buffer_load_dwordx4 v[{r}:{r+3}], v1, s[16:19], s38 offen {ldf}".rstrip())
            if k != NQ - 1: A("  s_add_u32 s38, s38, s46")
        if lwin and k >= lwin: accum(k - lwin)
        if gate == "issue" and sigk < NQ and k == sigk - 1:
            A("  s_cmp_eq_u32 s44, 2")
            A("  s_cbranch_scc0 L_nosigk")
            A(f"  v_mov_b32 v{X+5}, 1")
            A("  s_mov_b64 exec, 1")
            A(f"  ds_add_u32 v7, v{X+5} offset:{L_CTL+24}")
            A("  s_mov_b64 exec, -1")
            A("L_nosigk:")
    stamp(1)
    if fastpro: deferred()
    else:
        A("  s_waitcnt lgkmcnt(0)")
        A("  s_add_u32 s56, s56, 0x9e3779b9     ; tag")
    if chain:
        A(f"  v_mov_b32 v{T}, 1")
        A("  s_mov_b64 exec, 1")
        A(f"  ds_add_u32 v{X+7}, v{T} offset:{L_CTL+32}")
        A("  s_mov_b64 exec, -1")
    A("  s_cmp_eq_u32 s44, 2")
    A("  s_cbranch_scc0 L_notg2")
    if gate == "issue" and sigk >= NQ:
        A(f"  v_mov_b32 v{T}, 1")
        A("  s_mov_b64 exec, 1")
        A(f"  ds_add_u32 v7, v{T} offset:{L_CTL+24}")
        A("  s_mov_b64 exec, -1")
    if prio or boost2: A("  s_setprio 3")
    A("L_notg2:")
    for k in range((NQ - lwin) if lwin else 0, NQ):
        A(f"  s_waitcnt vmcnt({NQ - 1 - k})")
        accum(k)
    stamp(2)
    if fastpro:
        A("  s_waitcnt lgkmcnt(0)")
        A("  s_add_u32 s56, s56, 0x9e3779b9     ; tag")
    if stop == 1:
        for i in (3,4,5,6): stamp(i)
        A("  s_branch L_fin")
    if gate == "land":
        A("  s_cmp_eq_u32 s44, 2")
        A("  s_cbranch_scc0 L_notg2b")
        A(f"  v_mov_b32 v{T}, 1")
        A("  s_mov_b64 exec, 1")
        A(f"  ds_add_u32 v7, v{T} offset:{L_CTL+24}")
        A("  s_mov_b64 exec, -1")
        A("L_notg2b:")
    A("  s_nop 1")
    for e in range(4): A(f"  v_permlane32_swap_b32 v{ACC+e}, v{ACC+e+4}")
    for e in range(4): A(f"  v_add_f32 v{ACC+e}, v{ACC+e}, v{ACC+e+4}")
    A("  s_nop 1")
    for e in range(2): A(f"  v_permlane16_swap_b32 v{ACC+e}, v{ACC+e+2}")
    for e in range(2): A(f"  v_add_f32 v{ACC+e}, v{ACC+e}, v{ACC+e+2}")
    A("  s_nop 1")
    A(f"  v_add_f32_dpp v{T}, v{ACC}, v{ACC} row_ror:8 row_mask:0xf bank_mask:0x3")
    A(f"  v_add_f32_dpp v{T}, v{ACC+1}, v{ACC+1} row_ror:8 row_mask:0xf bank_mask:0xc")
    A(f"  v_lshlrev_b32 v{T+1}, 2, v0")
    A(f"  ds_write_b32 v{T+1}, v{T} offset:{L_SLOT}")
    A(f"  s_lshl_b32 s47, s44, 2             ; g*4")
    A(f"  v_mov_b32 v{X}, s47")
    def emit_dry():
        A(f"  s_cmp_eq_u32 s14, {dry}")
        A("  s_cbranch_scc0 L_nodry")
        A("  s_mov_b32 s83, 1")
        A("  s_mov_b64 exec, 0")
        A("  s_branch L_storecode")
        A("L_dryback:")
        A("  s_mov_b64 exec, -1")
        A("L_nodry:")
        A("  s_mov_b32 s83, 0")
    if dry is not None and late: emit_dry()
    if late:
        A("  s_cmp_eq_u32 s44, 2")
        A("  s_cbranch_scc1 L_nolate")
        lds_spin(f"v7 offset:{L_CTL+24}", 4, "late")
        A("L_nolate:")
    A(f"  v_mov_b32 v{T+2}, 1")
    A("  s_waitcnt lgkmcnt(0)")
    A("  s_mov_b64 exec, 1")
    A(f"  ds_add_rtn_u32 v{T+3}, v{X}, v{T+2} offset:{L_CTL}")
    A("  s_waitcnt lgkmcnt(0)")
    A("  s_mov_b64 exec, -1")
    A(f"  v_readfirstlane_b32 s41, v{T+3}")
    A("  s_cmp_eq_u32 s41, 3")
    A("  s_cbranch_scc0 L_nopub")
    A(f"  s_lshl_b32 s47, s44, 10            ; g*1024")
    A(f"  v_lshl_add_u32 v{T+1}, v3, 2, s47")
    for q in range(4): A(f"  ds_read_b32 v{T+4+q}, v{T+1} offset:{L_SLOT + 256*q}")
    A("  s_waitcnt lgkmcnt(0)")
    A(f"  v_add_f32 v{T+4}, v{T+4}, v{T+5}")
    A(f"  v_add_f32 v{T+6}, v{T+6}, v{T+7}")
    A(f"  s_lshl_b32 s40, s44, 17            ; g*131072")
    A(f"  s_add_u32 s40, s40, s39")
    A(f"  v_add_f32 v{T+4}, v{T+4}, v{T+6}")
    A(f"  v_mov_b32 v{T+5}, s56")
    A(f"  buffer_store_dwordx2 v[{T+4}:{T+5}], v2, s[28:31], s40 offen {pubf}")
    A("L_nopub:")
    stamp(3)
    if stop == 2:
        for i in (4,5,6): stamp(i)
        A("  s_branch L_fin")
    if dry is not None and not late and not dryafter: emit_dry()
    if nored: A("  s_branch L_nored")
    A("  s_cmp_lt_u32 s2, 24")
    A("  s_cbranch_scc0 L_nored")
    A("  s_lshr_b32 s48, s2, 3              ; tg")
    if late or semi: A("  s_mov_b32 s49, s48")
    else: A("  s_and_b32 s49, s48, 2")
    A("  s_cmp_eq_u32 s44, s49")
    A("  s_cbranch_scc0 L_nored")
    A(f"  buffer_load_ushort v{X+1}, off, s[32:35], 0")
    if semi:
        A("  s_cmp_eq_u32 s44, 2")
        A("  s_cbranch_scc1 L_semi_r")
        lds_spin(f"v7 offset:{L_CTL+24}", 4, "semr")
        A("L_semi_r:")
    if rwait:
        A("  s_lshl_b32 s49, s48, 2")
        A(f"  v_mov_b32 v{X+4}, s49")
        lds_spin(f"v{X+4} offset:{L_CTL}", 4, "rw")
    if half:
        A("  s_and_b32 s49, s2, 7               ; i")
        A("  s_lshl_b32 s50, s48, 17")
        A("  s_lshl_b32 s51, s49, 6")
        A("  s_add_u32 s50, s50, s51")
        A("  s_lshl_b32 s51, s45, 15")
        A("  s_add_u32 s50, s50, s51            ; tg*131072 + i*64 + q*32768")
        for m in range(1,4): A(f"  s_add_u32 s{56+m}, s50, {8192*m}")
        A(f"  v_lshrrev_b32 v{X+2}, 2, v3")
        A(f"  v_lshlrev_b32 v{X+2}, 9, v{X+2}")
        A(f"  v_and_b32 v{X+3}, 3, v3")
        A(f"  v_lshl_add_u32 v{X+2}, v{X+3}, 4, v{X+2}   ; (l>>2)*512 + (l&3)*16")
        for _ in range(rdelay): A("  s_sleep 32")
        A("  s_mov_b32 s42, 0")
        A("L_rpoll:")
        for m in range(4):
            A(f"  buffer_load_dwordx4 v[{T+4*m}:{T+4*m+3}], v{X+2}, s[28:31], s{50 if m==0 else 56+m} offen {rpf}")
        A("  s_waitcnt vmcnt(0)")
        for m in range(8): A(f"  v_xor_b32 v{T+2*m+1}, s56, v{T+2*m+1}")
        A(f"  v_or3_b32 v{X+3}, v{T+1}, v{T+3}, v{T+5}")
        A(f"  v_or3_b32 v{X+3}, v{X+3}, v{T+7}, v{T+9}")
        A(f"  v_or3_b32 v{X+3}, v{X+3}, v{T+11}, v{T+13}")
        A(f"  v_or_b32 v{X+3}, v{X+3}, v{T+15}")
        A(f"  v_cmp_ne_u32 vcc, 0, v{X+3}")
        A("  s_cbranch_vccz L_rok")
        if rmask: A("  s_mov_b64 exec, vcc")
        if rsleep: A(f"  s_sleep {rsleep}")
        A("  s_add_u32 s42, s42, 1")
        A(f"  s_cmp_lt_u32 s42, {SPIN}")
        A("  s_cbranch_scc1 L_rpoll")
        A("L_rok:")
        if rmask: A("  s_mov_b64 exec, -1")
        stamp(8)
        A(f"  v_add_f32 v{T}, v{T}, v{T+4}")
        A(f"  v_add_f32 v{T+2}, v{T+2}, v{T+6}")
        A(f"  v_add_f32 v{T+8}, v{T+8}, v{T+12}")
        A(f"  v_add_f32 v{T+10}, v{T+10}, v{T+14}")
        A(f"  v_add_f32 v{T}, v{T}, v{T+8}")
        A(f"  v_add_f32 v{T+2}, v{T+2}, v{T+10}")
        for rr in (8, 4):
            A("  s_nop 1")
            A(f"  v_add_f32_dpp v{T}, v{T}, v{T} row_ror:{rr} row_mask:0xf bank_mask:0xf")
            A(f"  v_add_f32_dpp v{T+2}, v{T+2}, v{T+2} row_ror:{rr} row_mask:0xf bank_mask:0xf")
        A("  s_nop 1")
        A(f"  v_permlane32_swap_b32 v{T}, v{T+2}")
        A(f"  v_add_f32 v{T}, v{T}, v{T+2}")
        A(f"  v_mov_b32 v{T+1}, v{T}")
        A("  s_nop 1")
        A(f"  v_permlane16_swap_b32 v{T}, v{T+1}")
        A(f"  v_add_f32 v{T}, v{T}, v{T+1}")
        A(f"  v_and_b32 v{T+1}, 3, v3")
        A(f"  v_lshlrev_b32 v{T+1}, 3, v{T+1}")
        A(f"  v_lshrrev_b32 v{T+2}, 5, v3")
        A(f"  v_lshl_add_u32 v{T+1}, v{T+2}, 2, v{T+1}")
        A(f"  s_lshl_b32 s50, s45, 5")
        A(f"  v_add_u32 v{T+1}, s50, v{T+1}")
        A(f"  v_mov_b32 v{T+2}, 1")
        A("  s_mov_b32 exec_lo, 0xf")
        A("  s_mov_b32 exec_hi, 0xf")
        A(f"  ds_write_b32 v{T+1}, v{T} offset:{L_RED}")
        A("  s_waitcnt lgkmcnt(0)")
        A("  s_mov_b64 exec, 1")
        A(f"  ds_add_rtn_u32 v{T+3}, v7, v{T+2} offset:{L_CTL+48}")
        A("  s_waitcnt lgkmcnt(0)")
        A("  s_mov_b64 exec, -1")
        A(f"  v_readfirstlane_b32 s41, v{T+3}")
        A("  s_cmp_eq_u32 s41, 3")
        A("  s_cbranch_scc0 L_nored")
        A(f"  v_and_b32 v{T+2}, 7, v3")
        A(f"  v_lshlrev_b32 v{T+2}, 2, v{T+2}")
        for q in range(4): A(f"  ds_read_b32 v{T+4+q}, v{T+2} offset:{L_RED + 32*q}")
        A(f"  v_lshlrev_b32 v{X+1}, 16, v{X+1}    ; w as f32")
        A("  s_mov_b32 s52, 0x36800000           ; 2^-18")
        A("  s_mov_b32 s53, 0xbfb8aa3b           ; -log2(e)")
        A("  s_lshl_b32 s50, s2, 7")
        A(f"  s_add_u32 s50, s50, {H2}")
        A("  s_waitcnt lgkmcnt(0)")
        A(f"  v_add_f32 v{T+4}, v{T+4}, v{T+5}")
        A(f"  v_add_f32 v{T+6}, v{T+6}, v{T+7}")
        A(f"  v_add_f32 v{T}, v{T+4}, v{T+6}")
        def rnd(reg):
            A(f"  v_cvt_pk_bf16_f32 v{reg}, v{reg}, v{reg}")
            A(f"  v_and_b32 v{reg}, s36, v{reg}")
        rnd(T)
        A(f"  v_mul_f32 v{T}, s52, v{T}")
        rnd(T)
        A(f"  v_mul_f32 v{T}, v{X+1}, v{T}")
        rnd(T)
        A(f"  v_add_f32 v{T}, 0, v{T}")
        A(f"  v_mul_f32 v{T}, s53, v{T}")
        A(f"  v_exp_f32 v{T}, v{T}")
        A(f"  v_lshlrev_b32 v{T+2}, 3, v3")
        A(f"  v_add_f32 v{T}, 1.0, v{T}")
        A(f"  v_rcp_f32 v{T}, v{T}")
        A(f"  v_mov_b32 v{T+1}, s56")
        rnd(T)
        A(f"  v_mov_b32 v{T+1}, s56")
        A("  s_mov_b64 exec, 0xffff")
        A(f"  buffer_store_dwordx2 v[{T}:{T+1}], v{T+2}, s[28:31], s50 offen sc1")
        stamp(9)
        if ts:
            A("  s_waitcnt vmcnt(0)")
            stamp(10)
        A("  s_mov_b64 exec, -1")
    else:
        A("  s_and_b32 s49, s2, 7               ; i")
        A("  s_lshl_b32 s49, s49, 2")
        A("  s_add_u32 s49, s49, s45            ; j = 4i+q")
        A("  s_lshl_b32 s50, s48, 17")
        if h1N:
            A("  s_lshl_b32 s51, s49, 4")
            A("  s_add_u32 s50, s50, s51            ; tg*131072 + j*16")
            A(f"  v_lshlrev_b32 v{X+2}, 9, v3         ; lane*512")
            for m in range(1,4): A(f"  s_add_u32 s{56+m}, s50, {32768*m}")
        else:
            A("  s_lshl_b32 s51, s49, 12")
            A("  s_add_u32 s50, s50, s51            ; tg*131072 + j*4096")
            A(f"  v_lshlrev_b32 v{X+2}, 4, v3")
        for _ in range(rdelay): A("  s_sleep 32")
        A("  s_mov_b32 s42, 0")
        A("L_rpoll:")
        for m in range(4):
            if h1N: A(f"  buffer_load_dwordx4 v[{T+4*m}:{T+4*m+3}], v{X+2}, s[28:31], s{50 if m==0 else 56+m} offen {rpf}")
            else: A(f"  buffer_load_dwordx4 v[{T+4*m}:{T+4*m+3}], v{X+2}, s[28:31], s50 offen offset:{1024*m} {rpf}")
        A("  s_waitcnt vmcnt(0)")
        for m in range(8): A(f"  v_xor_b32 v{T+2*m+1}, s56, v{T+2*m+1}")
        A(f"  v_or3_b32 v{X+3}, v{T+1}, v{T+3}, v{T+5}")
        A(f"  v_or3_b32 v{X+3}, v{X+3}, v{T+7}, v{T+9}")
        A(f"  v_or3_b32 v{X+3}, v{X+3}, v{T+11}, v{T+13}")
        A(f"  v_or_b32 v{X+3}, v{X+3}, v{T+15}")
        A(f"  v_cmp_ne_u32 vcc, 0, v{X+3}")
        A("  s_cbranch_vccz L_rok")
        if rmask:
            A("  s_mov_b64 exec, vcc")
        if rsleep: A(f"  s_sleep {rsleep}")
        A("  s_add_u32 s42, s42, 1")
        A(f"  s_cmp_lt_u32 s42, {SPIN}")
        A("  s_cbranch_scc1 L_rpoll")
        A("L_rok:")
        if rmask: A("  s_mov_b64 exec, -1")
        stamp(8)
        if ts: A("  s_mov_b32 s82, s42")
        A(f"  v_add_f32 v{T}, v{T}, v{T+4}")
        A(f"  v_add_f32 v{T+2}, v{T+2}, v{T+6}")
        A(f"  v_add_f32 v{T+8}, v{T+8}, v{T+12}")
        A(f"  v_add_f32 v{T+10}, v{T+10}, v{T+14}")
        A(f"  v_add_f32 v{T}, v{T}, v{T+8}")
        A(f"  v_add_f32 v{T+2}, v{T+2}, v{T+10}")
        A("  s_nop 1")
        A(f"  v_permlane32_swap_b32 v{T}, v{T+2}")
        A(f"  v_add_f32 v{T}, v{T}, v{T+2}")
        A(f"  v_mov_b32 v{T+1}, v{T}")
        A("  s_nop 1")
        A(f"  v_permlane16_swap_b32 v{T}, v{T+1}")
        A(f"  v_add_f32 v{T}, v{T}, v{T+1}")
        for rr in (8, 4, 2, 1):
            A("  s_nop 1")
            A(f"  v_add_f32_dpp v{T}, v{T}, v{T} row_ror:{rr} row_mask:0xf bank_mask:0xf")
        A(f"  v_lshlrev_b32 v{X+1}, 16, v{X+1}    ; w as f32")
        A("  s_mov_b32 s52, 0x36800000           ; 2^-18")
        A("  s_mov_b32 s53, 0xbfb8aa3b           ; -log2(e)")
        def rnd(reg):
            A(f"  v_cvt_pk_bf16_f32 v{reg}, v{reg}, v{reg}")
            A(f"  v_and_b32 v{reg}, s36, v{reg}")
        rnd(T)
        A(f"  v_mul_f32 v{T}, s52, v{T}")
        rnd(T)
        A(f"  v_mul_f32 v{T}, v{X+1}, v{T}")
        rnd(T)
        A(f"  v_add_f32 v{T}, 0, v{T}")
        A(f"  v_mul_f32 v{T}, s53, v{T}")
        A(f"  v_exp_f32 v{T}, v{T}")
        A("  s_nop 0")
        A(f"  v_add_f32 v{T}, 1.0, v{T}")
        A(f"  v_rcp_f32 v{T}, v{T}")
        A("  s_nop 0")
        rnd(T)
        A(f"  v_lshrrev_b32 v{T+1}, 5, v3")
        A(f"  s_lshl_b32 s50, s45, 3")
        A(f"  v_lshl_add_u32 v{T+1}, v{T+1}, 2, s50     ; q*8 + v*4")
        A(f"  v_mov_b32 v{T+2}, 1")
        A("  s_mov_b32 exec_lo, 1")
        A("  s_mov_b32 exec_hi, 1")
        A(f"  ds_write_b32 v{T+1}, v{T} offset:{L_RED}")
        A("  s_waitcnt lgkmcnt(0)")
        A("  s_mov_b64 exec, 1")
        A(f"  ds_add_rtn_u32 v{T+3}, v7, v{T+2} offset:{L_CTL+48}")
        A("  s_waitcnt lgkmcnt(0)")
        A("  s_mov_b64 exec, -1")
        A(f"  v_readfirstlane_b32 s41, v{T+3}")
        A("  s_cmp_eq_u32 s41, 3")
        A("  s_cbranch_scc0 L_nored")
        A(f"  v_and_b32 v{T+2}, 7, v3")
        A(f"  v_lshlrev_b32 v{T+2}, 2, v{T+2}")
        A("  s_mov_b64 exec, 0xffff")
        A(f"  ds_read_b32 v{T}, v{T+2} offset:{L_RED}")
        A(f"  v_lshlrev_b32 v{T+2}, 3, v3")
        A(f"  v_mov_b32 v{T+1}, s56")
        A("  s_lshl_b32 s50, s2, 7")
        A(f"  s_add_u32 s50, s50, {H2}")
        A("  s_waitcnt lgkmcnt(0)")
        A(f"  buffer_store_dwordx2 v[{T}:{T+1}], v{T+2}, s[28:31], s50 offen sc1")
        stamp(9)
        if ts:
            A("  s_waitcnt vmcnt(0)")
            stamp(10)
        A("  s_mov_b64 exec, -1")
    A("L_nored:")
    if dry is not None and not late and dryafter: emit_dry()
    if nopoll:
        for i in (4,5,6): stamp(i)
        A("  s_branch L_fin")
    A("  s_cmp_eq_u32 s45, 3")
    A("  s_cbranch_scc0 L_nopoll")
    if semi:
        A("  s_cmp_eq_u32 s44, 2")
        A("  s_cbranch_scc1 L_semi_p")
        lds_spin(f"v7 offset:{L_CTL+24}", 4, "semp")
        A("L_semi_p:")
    A(f"  v_lshrrev_b32 v{X+2}, 3, v3")
    A(f"  v_lshlrev_b32 v{X+2}, 7, v{X+2}")
    A(f"  v_and_b32 v{X+3}, 7, v3")
    A(f"  v_lshl_add_u32 v{X+2}, v{X+3}, 3, v{X+2}   ; (l>>3)*128 + (l&7)*8")
    A("  s_lshl_b32 s50, s44, 10")
    A(f"  s_add_u32 s50, s50, {H2}")
    for _ in range(wdelay): A("  s_sleep 32")
    A("  s_mov_b32 s42, 0")
    A("L_wpoll:")
    A(f"  buffer_load_dwordx2 v[{T}:{T+1}], v{X+2}, s[28:31], s50 offen {wpf}")
    A("  s_waitcnt vmcnt(0)")
    A(f"  v_cmp_ne_u32 vcc, s56, v{T+1}")
    A("  s_cbranch_vccz L_wok")
    if sleep_poll: A(f"  s_sleep {sleep_poll}")
    A("  s_add_u32 s42, s42, 1")
    A(f"  s_cmp_lt_u32 s42, {SPIN}")
    A("  s_cbranch_scc1 L_wpoll")
    A("L_wok:")
    A(f"  v_lshl_add_u32 v{T+1}, v5, 3, v4")
    A(f"  v_lshlrev_b32 v{T+1}, 2, v{T+1}")
    A("  s_lshl_b32 s50, s44, 8")
    A(f"  v_add_u32 v{T+1}, s50, v{T+1}")
    A(f"  ds_write_b32 v{T+1}, v{T} offset:{L_S}")
    A(f"  v_mov_b32 v{T+2}, 1")
    A("  s_waitcnt lgkmcnt(0)")
    A("  s_mov_b64 exec, 1")
    A(f"  ds_write_b32 v{X}, v{T+2} offset:{L_CTL+12}")
    A("  s_mov_b64 exec, -1")
    A("  s_cmp_eq_u32 s2, 0")
    A("  s_cbranch_scc0 L_nopoll")
    A("  s_cmp_eq_u32 s44, 2")
    A("  s_cbranch_scc0 L_nopoll")
    lds_spin(f"v7 offset:{L_CTL+12}", 1, "e0")
    lds_spin(f"v7 offset:{L_CTL+16}", 1, "e1")
    A(f"  v_mov_b32 v{T+2}, s56")
    A(f"  s_mov_b32 s50, {EOFF}")
    A("  s_mov_b64 exec, 1")
    A(f"  buffer_store_dword v{T+2}, off, s[28:31], s50 sc1")
    A("  s_mov_b64 exec, -1")
    A("L_nopoll:")
    lds_spin(f"v{X} offset:{L_CTL+12}", 1, "sf")
    stamp(4)
    A("  s_lshl_b32 s50, s44, 8")
    A(f"  v_lshl_add_u32 v{T}, v5, 5, s50     ; g*256 + (l&7)*32")
    A(f"  ds_read_b128 v[{ACC}:{ACC+3}], v{T} offset:{L_S}")
    A(f"  ds_read_b128 v[{ACC+4}:{ACC+7}], v{T} offset:{L_S+16}")
    if chain:
        if schain:
            A("  s_add_u32 s47, s44, 3")
            lds_spin(f"v{X+7} offset:{L_CTL+32}", "s47", "sch")
        else:
            A("  s_cmp_eq_u32 s44, 2")
            A("  s_cbranch_scc1 L_nogate")
            lds_spin(f"v{X+7} offset:{L_CTL+32}", 3, "sch")
            A("L_nogate:")
        if prio: A("  s_setprio 0")
    elif sgate is not None:
        A("  s_cmp_eq_u32 s44, 2")
        A("  s_cbranch_scc1 L_nogate")
        lds_spin(f"v7 offset:{L_CTL+24}", 4, "is")
        lds_spin(f"v7 offset:{L_CTL+12+4*sgate}", 1, "sg")
        if prio: A("  s_setprio 0")
        A("L_nogate:")
    elif late or semi:
        if evengate is not None:
            A("  s_getreg_b32 s84, hwreg(HW_REG_XCC_ID)")
            A("  s_and_b32 s84, s84, 1")
            A("  s_cmp_eq_u32 s84, 0")
            A("  s_cbranch_scc0 L_noeven")
            A(f"  s_cmp_lt_u32 s44, {evengate}")
            A("  s_cbranch_scc0 L_noeven")
            lds_spin(f"v7 offset:{L_CTL+12+4*evengate}", 1, "eg")
            A("L_noeven:")
        if prio: A("  s_setprio 0")
    elif not early_store:
        A("  s_cmp_eq_u32 s44, 2")
        A("  s_cbranch_scc1 L_nogate")
        lds_spin(f"v7 offset:{L_CTL+24}", 4, "is")
        if prio: A("  s_setprio 0")
        A("L_nogate:")
    A("  s_mov_b32 s38, s37")
    A("  s_waitcnt lgkmcnt(0)")
    stamp(5)
    if stop == 3:
        if chain and schain:
            A(f"  v_mov_b32 v{T}, 1")
            A("  s_mov_b64 exec, 1")
            A(f"  ds_add_u32 v{X+7}, v{T} offset:{L_CTL+32}")
            A("  s_mov_b64 exec, -1")
        stamp(6)
        A("  s_branch L_fin")
    if sonly:
        A("  s_cmp_eq_u32 s44, 0")
        A("  s_cbranch_scc1 L_nosonly")
        lds_spin(f"v{X+7} offset:{L_CTL+32}", "s44", "so")
        A("L_nosonly:")
    if boost2: A("  s_setprio 0")
    if g2gate:
        A("  s_cmp_eq_u32 s44, 2")
        A("  s_cbranch_scc0 L_nog2gate")
        lds_spin(f"v{X+7} offset:{L_CTL+32}", 1, "g2g")
        A("L_nog2gate:")
    if evenswin:
        A("  s_getreg_b32 s84, hwreg(HW_REG_XCC_ID)")
        A("  s_and_b32 s84, s84, 1")
        A("  s_xor_b32 s84, s84, 1")
        if evenmin:
            A(f"  s_cmp_ge_u32 s44, {evenmin}")
            A("  s_cselect_b32 s84, s84, 0")
        A("  s_mov_b32 s85, 0")
        A("  s_mov_b64 vcc, s[84:85]")
    if dry is not None: A("L_storecode:")
    for k in range(NQ):
        r = DATA + 4 * k
        for d in range(4):
            t0 = T + 2 * d
            A(f"  v_lshlrev_b32 v{t0}, 16, v{r+d}")
            A(f"  v_and_b32 v{t0+1}, s36, v{r+d}")
            if pk:
                A(f"  v_pk_mul_f32 v[{t0}:{t0+1}], v[{t0}:{t0+1}], v[{ACC+2*d}:{ACC+2*d+1}]")
            else:
                A(f"  v_mul_f32 v{t0}, v{t0}, v{ACC+2*d}")
                A(f"  v_mul_f32 v{t0+1}, v{t0+1}, v{ACC+2*d+1}")
        for d in range(4):
            t0 = T + 2 * d
            A(f"  v_cvt_pk_bf16_f32 v{r+d}, v{t0}, v{t0+1}")
        if swin and k >= swin and k < swinn: A(f"  s_waitcnt vmcnt({swin-1})")
        ew = evenswin if k < evenks else evenb
        if ew and k >= max(ew, evenk0):
            A(f"  s_cbranch_vccz L_ew{k}")
            A(f"  s_waitcnt vmcnt({ew-1})")
            A(f"L_ew{k}:")
        if dry is not None: A(f"  s_cbranch_execz L_sk{k}")
        if layout == "R":
            A(f"  buffer_store_dwordx4 v[{r}:{r+3}], v1, s[20:23], s38 offen offset:{(k & 1) * 3072 if runlen > 1 else 0} {stf}".rstrip())
            if dry is not None: A(f"L_sk{k}:")
            if k != NQ - 1:
                if runlen == 1: A(f"  s_add_u32 s38, s38, {stride}")
                elif k & 1:
                    step = 6144 if ((k + 1) % runlen) else stride - (runlen - 2) * 3072
                    A(f"  s_add_u32 s38, s38, {step}")
        elif stride < 4096:
            off = (k & 1) * stride
            A(f"  buffer_store_dwordx4 v[{r}:{r+3}], v1, s[20:23], s38 offen offset:{off} {stf}".rstrip())
            if dry is not None: A(f"L_sk{k}:")
            if (k & 1) and k != NQ - 1: A("  s_add_u32 s38, s38, s46")
        else:
            A(f"  buffer_store_dwordx4 v[{r}:{r+3}], v1, s[20:23], s38 offen {stf}".rstrip())
            if dry is not None: A(f"L_sk{k}:")
            if k != NQ - 1: A("  s_add_u32 s38, s38, s46")
    if dry is not None:
        A("  s_cmp_eq_u32 s83, 1")
        A("  s_cbranch_scc1 L_dryback")
    if (chain and schain) or sonly or g2gate:
        A(f"  v_mov_b32 v{T}, 1")
        A("  s_mov_b64 exec, 1")
        A(f"  ds_add_u32 v{X+7}, v{T} offset:{L_CTL+32}")
        A("  s_mov_b64 exec, -1")
    stamp(6)
    A("L_fin:")
    if ts and meas:
        a, b, M = meas
        A("  s_waitcnt vmcnt(0)")
        stamp(7)
        A("  s_waitcnt lgkmcnt(0)")
        A("  s_mul_i32 s15, s2, 12"); A("  s_add_u32 s15, s15, s14")
        A(f"  s_cmp_eq_u32 s15, {meas_wave[0]}")
        A("  s_cbranch_scc0 L_end")
        A(f"  s_sub_u32 s46, s{60+2*b}, s{60+2*a}")
        A(f"  s_mul_i32 s46, s46, {M}")
        A("  s_min_u32 s46, s46, 200000")
        A("L_spin:")
        A("  s_memrealtime s[48:49]")
        A("  s_waitcnt lgkmcnt(0)")
        A("  s_sub_u32 s47, s48, s74")
        A("  s_cmp_lt_u32 s47, s46")
        A("  s_cbranch_scc1 L_spin")
    elif ts:
        A("  s_waitcnt vmcnt(0)")
        stamp(7)
        A("  s_getreg_b32 s50, hwreg(HW_REG_XCC_ID)")
        A("  s_and_b32 s50, s50, 0xf")
        A("  s_waitcnt lgkmcnt(0)")
        A("  s_mov_b64 exec, 1")
        A("  s_mul_i32 s15, s2, 12"); A("  s_add_u32 s15, s15, s14")
        A(f"  s_mul_i32 s43, s15, 48")
        A(f"  s_add_u32 s43, s43, {TSOFF}")
        for i in range(8):
            A(f"  v_mov_b32 v{T+i}, s{60+2*i}")
            A(f"  buffer_store_dword v{T+i}, off, s[28:31], s43 offset:{4*i}")
        A(f"  v_mov_b32 v{T+8}, s50")
        A(f"  buffer_store_dword v{T+8}, off, s[28:31], s43 offset:32")
        for i in (8,9,10):
            A(f"  v_mov_b32 v{T+i+1}, s{60+2*i}")
            A(f"  buffer_store_dword v{T+i+1}, off, s[28:31], s43 offset:{4*(i+1)}")
    A("L_end:")
    A("  s_endpgm")
    A('.section .rodata,"a"'); A(".p2align 6"); A(f".amdhsa_kernel {NAME}")
    A("  .amdhsa_next_free_vgpr 168"); A("  .amdhsa_next_free_sgpr 96"); A("  .amdhsa_accum_offset 168")
    A("  .amdhsa_group_segment_fixed_size 0"); A("  .amdhsa_kernarg_size 40"); A("  .amdhsa_user_sgpr_count 2")
    A("  .amdhsa_user_sgpr_kernarg_segment_ptr 1"); A("  .amdhsa_system_sgpr_workgroup_id_x 1"); A("  .amdhsa_float_denorm_mode_32 3")
    A(".end_amdhsa_kernel")
    return "\n".join(L) + "\n"
def mk_wsched(spec):
    if not spec: return None
    k1,k2,Wa,WbA,WbB,WcB = [int(x) for x in spec.split(",")]
    return lambda k: ((Wa if k < k1 else WbA), (Wa if k < k1 else (WbB if k < k2 else WcB)))
meas_wave = [0]
if __name__ == "__main__":
    ap = argparse.ArgumentParser()
    ap.add_argument("-o", default="-"); ap.add_argument("--layout", default="A"); ap.add_argument("--ldf", default="nt"); ap.add_argument("--stf", default="sc1")
    ap.add_argument("--ts", action="store_true"); ap.add_argument("--swin", type=int, default=0); ap.add_argument("--noprio", action="store_true")
    ap.add_argument("--meas", default=None); ap.add_argument("--mw", type=int, default=0); ap.add_argument("--sp", type=int, default=4); ap.add_argument("--sl", type=int, default=1)
    ap.add_argument("--early", action="store_true"); ap.add_argument("--gate", default="issue"); ap.add_argument("--pk", action="store_true"); ap.add_argument("--lwin", type=int, default=0); ap.add_argument("--chain", action="store_true"); ap.add_argument("--noschain", action="store_true"); ap.add_argument("--rsleep", type=int, default=8); ap.add_argument("--clrw", type=int, default=8); ap.add_argument("--stop", type=int, default=0); ap.add_argument("--noclr", action="store_true"); ap.add_argument("--clrmode", default="sc"); ap.add_argument("--sigmode", default="atomic"); ap.add_argument("--rpf", default="sc1"); ap.add_argument("--wpf", default="sc1"); ap.add_argument("--pubf", default="sc1"); ap.add_argument("--rdelay", type=int, default=0); ap.add_argument("--wdelay", type=int, default=0); ap.add_argument("--h1T", action="store_true"); ap.add_argument("--warm", default=None); ap.add_argument("--rmask", action="store_true"); ap.add_argument("--rwait", action="store_true"); ap.add_argument("--late", action="store_true"); ap.add_argument("--nored", action="store_true"); ap.add_argument("--nopoll", action="store_true"); ap.add_argument("--half", action="store_true"); ap.add_argument("--sgate", type=int, default=None); ap.add_argument("--semi", action="store_true"); ap.add_argument("--sigk", type=int, default=32); ap.add_argument("--dry", type=int, default=None); ap.add_argument("--prostamp", action="store_true"); ap.add_argument("--swinn", type=int, default=32); ap.add_argument("--fastpro", action="store_true"); ap.add_argument("--evengate", type=int, default=None); ap.add_argument("--evenswin", type=int, default=0); ap.add_argument("--evenmin", type=int, default=0); ap.add_argument("--evenk0", type=int, default=0); ap.add_argument("--runlen", type=int, default=0); ap.add_argument("--lw1", type=int, default=0); ap.add_argument("--lw2", type=int, default=0); ap.add_argument("--boost2", action="store_true"); ap.add_argument("--sonly", action="store_true"); ap.add_argument("--evenb", type=int, default=0); ap.add_argument("--evenks", type=int, default=32); ap.add_argument("--g2gate", action="store_true"); ap.add_argument("--dryafter", action="store_true"); ap.add_argument("--wgperm", type=int, default=0); ap.add_argument("--wsched", default=None, help="k1,k2,Wa,WbA,WbB,WcB : g0: Wa for k<k1 then WbA ; g1/2: Wa for k<k1, WbB for k1<=k<k2, WcB after")
    a = ap.parse_args()
    meas_wave[0] = a.mw
    s = gen(layout=a.layout, ldf=a.ldf, stf=a.stf, ts=a.ts, swin=a.swin, prio=not a.noprio, meas=tuple(int(x) for x in a.meas.split(",")) if a.meas else None,
            sleep_poll=a.sp, sleep_lds=a.sl, early_store=a.early, gate=a.gate, pk=a.pk, lwin=a.lwin, chain=a.chain, schain=not a.noschain, rsleep=a.rsleep, clrw=(99 if a.noclr else a.clrw), stop=a.stop, clrmode=a.clrmode, sigmode=a.sigmode, rpf=a.rpf, wpf=a.wpf, pubf=a.pubf, rdelay=a.rdelay, wdelay=a.wdelay, h1N=not a.h1T, warm=a.warm, rmask=a.rmask, rwait=a.rwait, late=a.late, nored=a.nored, nopoll=a.nopoll, half=a.half, sgate=a.sgate, semi=a.semi, sigk=a.sigk, dry=a.dry, prostamp=a.prostamp, swinn=a.swinn, fastpro=a.fastpro, evengate=a.evengate, evenswin=a.evenswin, evenmin=a.evenmin, evenk0=a.evenk0, runlen=a.runlen, lw1=a.lw1, lw2=a.lw2, boost2=a.boost2, sonly=a.sonly, evenb=a.evenb, evenks=a.evenks, wsched=mk_wsched(a.wsched), g2gate=a.g2gate, dryafter=a.dryafter, wgperm=a.wgperm)
    if a.o == "-": sys.stdout.write(s)
    else: open(a.o, "w").write(s)
```
